```python
import torch

def _softmax(x, axis=-1):
    return torch.softmax(x, dim=axis)
def _gelu(x):
    return torch.nn.functional.gelu(x, approximate="tanh")
def _silu(x):
    return torch.nn.functional.silu(x)
def _sigmoid(x):
    return torch.sigmoid(x)
def _layernorm(x, axis=-1, eps=1e-5):
    m = x.mean(dim=axis, keepdim=True)
    v = x.var(dim=axis, keepdim=True, unbiased=False)
    return (x - m) / torch.sqrt(v + eps)
def _scatter_add(tgt, idx, src, axis=0):
    return tgt.clone().index_add_(axis, idx, src)
def _segment_sum(src, seg, n):
    out = torch.zeros((n,) + src.shape[1:], dtype=src.dtype)
    return out.index_add_(0, seg, src)
def _pad(x, pw):
    flat = tuple(v for pair in reversed(pw) for v in pair)
    return torch.nn.functional.pad(x, flat)

kernel_name = 'sequential_preLN__compressed_kv_cla__glu_gated_bilinear__prompt'

def setup_inputs():

    _w = (lambda a: (lambda t: t.to(torch.bfloat16) if t.is_floating_point() else t)(torch.as_tensor(a)))
    def _A_setup():
        B, H, Sq, Sk, D, M = 1, 16, 2048, 2048, 256, 448
        Dc = 4 * D
        return {
            "x": _w((lambda *s: torch.randn(*s, dtype=torch.bfloat16) * 0.05)(B, Sq, M)),
            "c_kv": _w((lambda *s: torch.randn(*s, dtype=torch.bfloat16) * 0.4)(B, Sk, Dc)),
            "w_q": _w((lambda *s: torch.randn(*s, dtype=torch.bfloat16) * 1.6)(M, H, D) * (M ** -0.5)),
            "w_uk": _w((lambda *s: torch.randn(*s, dtype=torch.bfloat16) * 1.6)(Dc, H, D) * (Dc ** -0.5)),
            "w_uv": _w((lambda *s: torch.randn(*s, dtype=torch.bfloat16) * 0.4)(Dc, H, D) * (Dc ** -0.5)),
            "w_o": _w((lambda *s: torch.randn(*s, dtype=torch.bfloat16) * 0.4)(H, D, M) * ((H * D) ** -0.5)),
        }
    _A_in = _A_setup()

    def _B_setup():
        B, S, D, F = 1, 2048, 448, 1792
        return {
            "x": _w((lambda *s: torch.randn(*s, dtype=torch.bfloat16) * 0.05)(B, S, D)),
            "w_gate": _w((lambda *s: torch.randn(*s, dtype=torch.bfloat16) * 0.4)(D, F) * (D ** -0.5)),
            "w_up": _w((lambda *s: torch.randn(*s, dtype=torch.bfloat16) * 0.4)(D, F) * (D ** -0.5)),
            "w_down": _w((lambda *s: torch.randn(*s, dtype=torch.bfloat16) * 0.4)(F, D) * (F ** -0.5)),
        }
    _B_in = _B_setup()

    return {
        "A_x": _A_in["x"],
        "A_c_kv": _A_in["c_kv"],
        "A_w_q": _A_in["w_q"],
        "A_w_uk": _A_in["w_uk"],
        "A_w_uv": _A_in["w_uv"],
        "A_w_o": _A_in["w_o"],
        "B_x": _B_in["x"],
        "B_w_gate": _B_in["w_gate"],
        "B_w_up": _B_in["w_up"],
        "B_w_down": _B_in["w_down"],
    }

def reference(A_x, A_c_kv, A_w_q, A_w_uk, A_w_uv, A_w_o, B_x, B_w_gate, B_w_up, B_w_down):
    def _A_ref(x, c_kv, w_q, w_uk, w_uv, w_o):
        B, Sq, M = x.shape[0], x.shape[1], x.shape[2]
        Sk = c_kv.shape[1]
        H, D = w_q.shape[1], w_q.shape[2]
        q = torch.einsum("bqm,mhd->bhqd", x, w_q)
        k = torch.einsum("bkc,chd->bhkd", c_kv, w_uk)
        v = torch.einsum("bkc,chd->bhkd", c_kv, w_uv)
        scores = torch.einsum("bhqd,bhkd->bhqk", q, k) * (D ** -0.5)
        off = Sk - Sq
        qi = torch.arange(Sq)[:, None]
        kj = torch.arange(Sk)[None, :]
        cmask = kj <= (qi + off)
        scores = torch.where(cmask[None, None], scores, -1e9)
        p = _softmax(scores, axis=-1)
        ctx = torch.einsum("bhqk,bhkd->bhqd", p, v)
        return torch.einsum("bhqd,hdm->bqm", ctx, w_o)

    def _B_ref(x, w_gate, w_up, w_down):
        g = torch.einsum("bsd,df->bsf", x, w_gate)
        u = torch.einsum("bsd,df->bsf", x, w_up)
        h = g * u
        return torch.einsum("bsf,fd->bsd", h, w_down)

    x = A_x
    h = x + _A_ref(_layernorm(x, axis=-1), A_c_kv, A_w_q, A_w_uk, A_w_uv, A_w_o)
    h2 = h + _B_ref(_layernorm(h, axis=-1), B_w_gate, B_w_up, B_w_down)
    return h2
```

```python
import re

def vr(b, n=1, p='v'):
    return f"{p}{b}" if n == 1 else f"{p}[{b}:{b+n-1}]"
def ar(b, n=1): return vr(b, n, 'a')
def sr(b, n=1): return vr(b, n, 's')

_REG = re.compile(r'^(-|abs\(|\|)?([vas])(?:(\d+)|\[(\d+):(\d+)\])\)?\|?$')
def regs_of(op):
    op = op.strip()
    if op in ('vcc', 'vcc_lo', 'vcc_hi'): return {('s', 'vcc')}
    if op == 'exec': return {('s', 'exec')}
    if op == 'm0': return {('s', 'm0')}
    m = _REG.match(op)
    if not m: return set()
    k = m.group(2)
    if m.group(3) is not None: return {(k, int(m.group(3)))}
    return {(k, i) for i in range(int(m.group(4)), int(m.group(5)) + 1)}

TRANS = ('v_exp_f32', 'v_log_f32', 'v_rcp_f32', 'v_rsq_f32', 'v_sqrt_f32', 'v_sin_f32', 'v_cos_f32')

class Ins:
    def __init__(self, text):
        self.text = text
        t = text.split(';')[0].strip()
        self.label = t.endswith(':')
        parts = t.split(None, 1)
        self.op = parts[0] if parts else ''
        rest = parts[1] if len(parts) > 1 else ''
        ops = [o.strip() for o in rest.split(',')] if rest else []
        mods = ''
        if ops:
            sp = ops[-1].split(None, 1)
            ops[-1] = sp[0]
            mods = sp[1] if len(sp) > 1 else ''
        self.ops, self.mods = ops, mods
        op = self.op
        self.w, self.r = set(), set()
        self.kind = 'other'
        self.states = 1
        self.srcc = set(); self.srcab = set(); self.passes = 0
        R = lambda i: regs_of(ops[i]) if i < len(ops) else set()
        if self.label or op.startswith('.') or op == '':
            self.kind = 'none'; self.states = 0
        elif op == 's_nop':
            self.kind = 'salu'; self.states = int(ops[0], 0) + 1
        elif op.startswith('v_mfma'):
            self.kind = 'mfma'
            self.w = R(0); self.srcab = R(1) | R(2); self.srcc = R(3); self.r = self.srcab | self.srcc
            self.passes = 8 if '32x32' in op else 4
        elif op.startswith('ds_read') or op.startswith('ds_bpermute') or op.startswith('ds_swizzle'):
            self.kind = 'ds'; self.w = R(0)
            for i in range(1, len(ops)): self.r |= R(i)
        elif op.startswith('ds_'):
            self.kind = 'ds'
            for i in range(len(ops)): self.r |= R(i)
        elif op.startswith('buffer_load') or op.startswith('global_load'):
            self.kind = 'vmem'
            if ' lds' in ' ' + mods or 'load_lds' in op:
                for i in range(len(ops)): self.r |= R(i)
                self.r |= {('s', 'm0')}; self.dma = True
            else:
                self.w = R(0)
                for i in range(1, len(ops)): self.r |= R(i)
        elif op.startswith('buffer_store') or op.startswith('global_store') or op.startswith('buffer_atomic') or op.startswith('global_atomic'):
            self.kind = 'vmem'
            for i in range(len(ops)): self.r |= R(i)
            self.store_data = R(0) if op.startswith('buffer') else R(1)
            self.wide = ('x3' in op or 'x4' in op)
        elif op.startswith('buffer_') :
            self.kind = 'vmem'
        elif op.startswith('v_'):
            self.kind = 'valu'
            self.w = R(0)
            start = 1
            if op.startswith('v_cmp'):
                pass
            if op.startswith(('v_add_co', 'v_sub_co', 'v_addc_co', 'v_subb_co', 'v_div_scale', 'v_mad_u64')):
                self.w |= R(1); start = 2
            for i in range(start, len(ops)): self.r |= R(i)
            if op.startswith(('v_fmac', 'v_dot2c', 'v_pk_fmac')): self.r |= R(0)
            if op.startswith('v_permlane') and 'swap' in op:
                self.r |= R(0); self.w |= R(1)
            if op.startswith('v_cndmask') and len(ops) == 3: self.r |= {('s', 'vcc')}
            if op.startswith('v_cmpx'): self.w |= {('s', 'exec')}
        elif op.startswith('s_'):
            self.kind = 'salu'
            if op.startswith(('s_cmp', 's_cbranch', 's_branch', 's_waitcnt', 's_barrier', 's_endpgm', 's_setprio', 's_sleep', 's_bitcmp')):
                for i in range(len(ops)): self.r |= R(i)
            else:
                self.w = R(0)
                for i in range(1, len(ops)): self.r |= R(i)
        self.trans = op.replace('_e32', '').replace('_e64', '') in TRANS
        self.dpp = 'row_' in mods or 'quad_perm' in mods or '_dpp' in op
        self.dot = op.startswith('v_dot')

def vec(s): return {x for x in s if x[0] in 'va'}
def sca(s): return {x for x in s if x[0] == 's'}

def need(p, c):
    n = 0
    if p.kind == 'valu':
        pw_v, pw_s = vec(p.w), sca(p.w)
        if c.kind == 'mfma' and pw_v & c.r: n = max(n, 2)
        if c.kind == 'vmem' and pw_s & c.r: n = max(n, 5)
        if c.kind == 'valu':
            if pw_s & c.r: n = max(n, 4 if c.op.startswith(('v_readlane', 'v_writelane', 'v_div_fmas')) else 2)
            if c.op.startswith(('v_readlane', 'v_readfirstlane')) and pw_v & c.r: n = max(n, 1)
            if c.op.startswith('v_permlane') and pw_v & c.r: n = max(n, 2)
            if c.dpp and pw_v & c.r: n = max(n, 2)
            if p.trans and not c.trans and pw_v & c.r: n = max(n, 1)
            if p.dot and (pw_v & (c.r | c.w)) and not (c.op == p.op and not (pw_v & (regs_of(c.ops[1]) | regs_of(c.ops[2]))) ): n = max(n, 3)
        if ('s', 'exec') in p.w and c.kind in ('mfma',): n = max(n, 4)
        if p.trans and c.kind in ('mfma', 'vmem', 'ds') and pw_v & c.r: n = max(n, 2)
        if p.dot and c.kind in ('mfma', 'vmem', 'ds') and pw_v & c.r: n = max(n, 3)
    if p.kind == 'salu' and ('s', 'm0') in p.w and getattr(c, 'dma', False): n = max(n, 1)
    if p.kind == 'mfma':
        k = {4: 8, 8: 12}[p.passes]
        if c.kind == 'mfma':
            if p.w & c.srcab: n = max(n, k)
            if p.w & c.srcc and not (p.w == c.srcc and p.passes == c.passes): n = max(n, k - 2)
            if p.w & c.w and not (p.w == c.srcc) : n = max(n, k - 2)
        elif c.kind in ('valu', 'vmem', 'ds'):
            if p.w & (c.r | c.w): n = max(n, k)
            if c.kind == 'valu' and p.srcc & c.w: n = max(n, {4: 3, 8: 7}[p.passes])
    if p.kind == 'vmem' and getattr(p, 'wide', False) and c.kind == 'valu' and p.store_data & c.w: n = max(n, 2)
    if p.kind == 'vmem' and getattr(p, 'wide', False) and c.kind in ('ds', 'vmem', 'mfma') and p.store_data & c.w: n = max(n, 1)
    return n

def check_hazards(lines, name=''):
    ins = [Ins(l) for l in lines]
    probs = []
    for j, c in enumerate(ins):
        if c.kind == 'none': continue
        d = 0
        for i in range(j - 1, max(-1, j - 40), -1):
            p = ins[i]
            if p.op in ('s_branch', 's_endpgm'): break
            if p.kind != 'none':
                n = need(p, c)
                if n > d:
                    probs.append(f"{name}: line {j}: [{p.text.strip()}] -> [{c.text.strip()}] needs {n} has {d}")
            d += p.states
            if d >= 20: break
    return probs

class K:
    def __init__(self, name):
        self.name = name; self.L = []
    def e(self, *txt):
        for t in txt:
            for l in t.split('\n'):
                l = l.strip()
                if l: self.L.append(l if l.endswith(':') else '    ' + l)
    def label(self, s): self.L.append(f"{s}:")
    def srd(self, d, base, nbytes, add=None):
        if add:
            self.e(f"s_add_u32 s{d}, s{base}, {hex(add)}", f"s_addc_u32 s{d+1}, s{base+1}, 0")
        else:
            self.e(f"s_mov_b32 s{d}, s{base}", f"s_mov_b32 s{d+1}, s{base+1}")
        self.e(f"s_mov_b32 s{d+2}, {hex(nbytes)}", f"s_mov_b32 s{d+3}, 0x20000")
    def stamp(self, i):
        if getattr(self, 'prof', False):
            self.e(f"s_memtime s[{70+2*i}:{71+2*i}]", f"s_memrealtime s[{86+2*i}:{87+2*i}]", "s_waitcnt lgkmcnt(0)")
    def dump_stamps(self, n, wsptr, off):
        if not getattr(self, 'prof', False): return
        self.e("s_waitcnt vmcnt(0)")
        self.stamp(n - 1)
        self.e(f"s_add_u32 s4, s{wsptr}, {hex(off)}", f"s_addc_u32 s5, s{wsptr+1}, 0", "s_mov_b32 s6, 0x100000", "s_mov_b32 s7, 0x20000")
        self.e("s_lshl_b32 s3, s2, 8", "v_mov_b32 v2, s3", "v_lshrrev_b32 v3, 6, v0", "v_lshl_add_u32 v2, v3, 6, v2")
        for i in range(n):
            self.e(f"v_mov_b32 v4, s{70+2*i}", f"v_mov_b32 v5, s{86+2*i}", f"buffer_store_dwordx2 v[4:5], v2, s[4:7], 0 offen offset:{8*i}", "s_nop 1")
        self.e("s_waitcnt vmcnt(0)")
    def text(self): return f".p2align 8\n{self.name}:\n" + "\n".join(self.L) + "\n"
    def desc(self, vgpr, accum, sgpr=102):
        return (f".p2align 6\n.amdhsa_kernel {self.name}\n  .amdhsa_next_free_vgpr {vgpr}\n  .amdhsa_next_free_sgpr {sgpr}\n"
                f"  .amdhsa_accum_offset {accum}\n  .amdhsa_group_segment_fixed_size 0\n  .amdhsa_kernarg_size 104\n"
                f"  .amdhsa_float_denorm_mode_32 3\n"
                f"  .amdhsa_user_sgpr_count 2\n  .amdhsa_user_sgpr_kernarg_segment_ptr 1\n  .amdhsa_system_sgpr_workgroup_id_x 1\n.end_amdhsa_kernel\n")

def weave(mf, fill):
    out = list(fill.get(-1, []))
    for i, m in enumerate(mf):
        out.append(m)
        out.extend(fill.get(i, []))
    return out
```

```python
import sys
from asmlib import *
import k1

HEADER = open('sequential_preLN__compressed_kv_cla__glu_gated_bilinear__prompt.s.ref').read().split('; Override launch')[0]

def build(kernels, path, plain=False):
    out = [HEADER.rstrip('\n')]
    for k, vg, ac, lds, grid, blk in kernels:
        out.append(f"; @launch kernel={k.name} grid=({grid},1,1) block=({blk},1,1) lds={lds}" if not plain else f"; @launch grid=({grid},1,1) block=({blk},1,1) lds={lds}")
    out.append('.amdgcn_target "amdgcn-amd-amdhsa--gfx950"\n.text')
    seen = set()
    for k, vg, ac, lds, grid, blk in kernels:
        if k.name in seen: continue
        seen.add(k.name)
        out.append(f".globl {k.name}\n.type {k.name},@function")
        out.append(k.text())
        for p in check_hazards(k.L, k.name): print("HAZARD", p)
    out.append('.section .rodata,"a"')
    seen = set()
    for k, vg, ac, lds, grid, blk in kernels:
        if k.name in seen: continue
        seen.add(k.name)
        out.append(k.desc(vg, ac))
    open(path, 'w').write("\n".join(out))

if __name__ == '__main__':
    build([k1.gen_k1()], 'k1.s')
    build([k1.gen_k1({'prof':1})], 'k1p.s')
    build([k1.gen_k1({'prof':1,'st':' sc1'})], 'k1p_sc1.s')
    build([k1.gen_k1({'prof':1,'st':' nt'})], 'k1p_nt.s')
```

```python
from asmlib import *

MB = 1 << 20
WS_K, WS_V, WS_Q, WS_C = 0, 16 * MB, 32 * MB, 48 * MB
WS_PART = 64 * MB
WS_H = 96 * MB
WS_HH = 104 * MB
WS_FLAG = 120 * MB
WS_SIZE = 256 * MB
LOG2E = 1.4426950408889634

def f2u(x):
    import struct
    return struct.unpack('<I', struct.pack('<f', x))[0]

def gen_k1(opt=None):
    opt = opt or {}
    ST = opt.get('st', '')
    k = K('k1_kernel')
    e = k.e
    k.prof = opt.get('prof', False)
    vLane16, vW, vC, vDC, vDW, vX = 1, 2, 10, 12, 16, 20
    T0 = 22
    Y, X, XN, EP = 32, 96, 112, 224
    sC, sW, sX, sO = 16, 20, 24, 28
    e("s_cmp_ge_u32 s2, 256", "s_cbranch_scc1 L1_done")
    k.stamp(0)
    e("s_load_dwordx8 s[4:11], s[0:1], 0", "s_load_dwordx2 s[12:13], s[0:1], 32", "s_load_dwordx2 s[14:15], s[0:1], 96")
    e("v_and_b32 v22, 63, v0", "v_lshrrev_b32 v23, 6, v0", "v_lshlrev_b32 v1, 4, v22")
    e("v_readfirstlane_b32 s32, v23")
    e("v_and_b32 v24, 15, v22", "v_lshrrev_b32 v25, 4, v22")
    e("s_and_b32 s3, s2, 7", "s_lshr_b32 s33, s2, 3")
    e("s_and_b32 s36, s33, 7")
    e("s_lshr_b32 s34, s33, 3")
    e("s_and_b32 s35, s34, 1", "s_lshl_b32 s3, s3, 1", "s_add_u32 s35, s35, s3")
    e("s_lshr_b32 s37, s34, 1")
    e("s_and_b32 s38, s33, 1", "s_add_u32 s38, s38, s3")
    e("s_lshr_b32 s39, s33, 1")
    e("s_and_b32 s33, s32, 1", "s_lshr_b32 s34, s32, 1")
    e("s_lshl_b32 s40, s39, 7", "s_lshl_b32 s41, s32, 5", "s_add_u32 s40, s40, s41")
    e("v_add_u32 v26, s40, v24", "v_mul_u32_u24 v26, 896, v26", "v_lshl_add_u32 v20, v25, 4, v26", "v_add_u32 v21, 14336, v20")
    e("s_waitcnt lgkmcnt(0)")
    k.srd(sX, 4, 2048 * 896)
    for m in range(14):
        for c in range(2):
            r = XN + (m * 2 + c) * 4
            e(f"buffer_load_dwordx4 {vr(r,4)}, v{vX+c}, s[{sX}:{sX+3}], 0 offen offset:{64*m}")
    e("s_lshl_b32 s40, s36, 19", f"s_add_u32 s{sC}, s6, s40", f"s_addc_u32 s{sC+1}, s7, 0", f"s_mov_b32 s{sC+2}, 0x80000", f"s_mov_b32 s{sC+3}, 0x20000")
    e("s_cmp_eq_u32 s37, 1", "s_cselect_b32 s40, s12, s10", "s_cselect_b32 s41, s13, s11", "s_lshl_b32 s42, s35, 9")
    e(f"s_add_u32 s{sW}, s40, s42", f"s_addc_u32 s{sW+1}, s41, 0", f"s_sub_u32 s{sW+2}, {1024*8192}, s42", f"s_mov_b32 s{sW+3}, 0x20000")
    e("s_lshl_b32 s42, s38, 9", "s_add_u32 s56, s8, s42", "s_addc_u32 s57, s9, 0", f"s_sub_u32 s58, {448*8192}, s42")
    k.srd(sO, 14, WS_C)
    e("v_lshrrev_b32 v26, 3, v22", "s_lshl_b32 s40, s32, 6", "v_add_u32 v26, s40, v26", "v_lshlrev_b32 v26, 11, v26")
    e("v_and_b32 v27, 7, v22", "v_xor_b32 v27, v27, v25", "v_xor_b32 v28, 4, v27")
    e("v_lshl_add_u32 v27, v27, 4, v26", "v_lshl_add_u32 v28, v28, 4, v26")
    for i in range(4):
        e(f"v_add_u32 v{vDC+i}, {i*16384 - 1024*i}, v{27 + (i&1)}")
    e("v_lshrrev_b32 v26, 5, v22", "v_and_b32 v27, 31, v22")
    e("s_lshl_b32 s40, s33, 3")
    e("v_lshlrev_b32 v28, 1, v26", "v_xor_b32 v27, v27, v28", "v_xor_b32 v27, s40, v27")
    e("s_lshl_b32 s40, s32, 3", "v_add_u32 v26, s40, v26", "v_lshlrev_b32 v26, 13, v26")
    e("v_xor_b32 v28, 4, v27")
    e("v_lshl_add_u32 v27, v27, 4, v26", "v_lshl_add_u32 v28, v28, 4, v26")
    for i in range(4):
        e(f"v_add_u32 v{vDW+i}, {i*16384 - 1024*i}, v{27 + (i&1)}")
    e("s_mov_b32 s40, 0", "s_mov_b32 s41, 65536", "s_mov_b32 s42, 0")
    e("s_lshl_b32 s44, s32, 12", "s_add_u32 s45, s44, 16384", "s_add_u32 s46, s44, 32768", "s_add_u32 s47, s44, 49152")
    e("s_lshl_b32 s53, s32, 13", "s_add_u32 s53, s53, 65536")
    def dmaC(grp):
        return [f"s_add_u32 m0, s53, {4096*grp}" if grp else "s_mov_b32 m0, s53"] + [
            f"buffer_load_dwordx4 v{vDC+i}, s[{sC}:{sC+3}], s{40+grp} offen offset:{1024*i} lds" for i in range(4)]
    def dmaW(slot):
        return [f"s_mov_b32 m0, s{44+slot}"] + [
            f"buffer_load_dwordx4 v{vDW+i}, s[{sW}:{sW+3}], s42 offen offset:{1024*i} lds" for i in range(4)]
    def seq(l): e(l[0], "s_nop 0", *l[1:])
    for n in range(4):
        seq(dmaC(n & 1))
        if n & 1:
            e("s_add_u32 s40, s40, 128", "s_add_u32 s41, s41, 128", "s_add_u32 s53, s53, 32768")
        seq(dmaW(n))
        e(f"s_add_u32 s42, s42, {32*8192}")
    e("s_mov_b32 s55, s53", "s_sub_u32 s54, s53, 65536", "s_mov_b32 s60, 32768", "s_mov_b32 s61, -65536")
    e("v_lshrrev_b32 v26, 2, v24", "v_lshl_add_u32 v27, v25, 3, v26", "v_lshlrev_b32 v27, 9, v27")
    e("v_and_b32 v28, 3, v24", "v_lshl_add_u32 v27, v28, 3, v27")
    e("s_lshl_b32 s3, s34, 8", "v_add_u32 v27, s3, v27")
    e("v_and_b32 v28, 1, v25", "v_lshl_add_u32 v28, v28, 2, v26")
    for a in range(8):
        e(f"v_xor_b32 v29, {a}, v28", f"v_lshl_add_u32 v{vW+a}, v29, 5, v27")
    e("s_lshl_b32 s3, s33, 7", "v_add_u32 v26, s3, v24", "v_lshlrev_b32 v26, 7, v26", "v_add_u32 v26, 65536, v26")
    e("v_lshrrev_b32 v27, 1, v24", "v_xor_b32 v27, v27, v25", "v_xor_b32 v28, 4, v27")
    e(f"v_lshl_add_u32 v{vC}, v27, 4, v26", f"v_lshl_add_u32 v{vC+1}, v28, 4, v26")
    for i in range(256): e(f"v_accvgpr_write_b32 a{i}, 0")
    e("s_waitcnt vmcnt(32)")
    k.stamp(1)
    e("v_mov_b32 v22, 0x3f803f80")
    S = [24, 25]; Q2 = [26, 27]
    e("v_mov_b32 v24, 0", "v_mov_b32 v25, 0", "v_mov_b32 v26, 0", "v_mov_b32 v27, 0")
    for m in range(14):
        for r in range(4):
            for c in range(2):
                x = XN + (m * 2 + c) * 4 + r
                e(f"v_dot2c_f32_bf16 v{S[c]}, v{x}, v22", f"v_dot2c_f32_bf16 v{Q2[c]}, v{x}, v{x}")
    e("s_nop 2")
    for R in (24, 25, 26, 27):
        e(f"v_mov_b32 v{R+4}, v{R}")
    e("s_nop 1")
    for R in (24, 25, 26, 27): e(f"v_permlane32_swap_b32 v{R}, v{R+4}")
    for R in (24, 25, 26, 27): e(f"v_add_f32 v{R}, v{R}, v{R+4}")
    for R in (24, 25, 26, 27): e(f"v_mov_b32 v{R+4}, v{R}")
    e("s_nop 1")
    for R in (24, 25, 26, 27): e(f"v_permlane16_swap_b32 v{R}, v{R+4}")
    for R in (24, 25, 26, 27): e(f"v_add_f32 v{R}, v{R}, v{R+4}")
    e(f"s_mov_b32 s3, {hex(f2u(1.0/448))}", f"s_mov_b32 s62, {hex(f2u(1e-5))}", f"s_mov_b32 s63, {hex(f2u(LOG2E/16))}")
    for c in range(2):
        e(f"v_mul_f32 v{24+c}, s3, v{24+c}", f"v_mul_f32 v{26+c}, s3, v{26+c}")
        e(f"v_fma_f32 v{26+c}, -v{24+c}, v{24+c}, v{26+c}", f"v_max_f32 v{26+c}, 0, v{26+c}", f"v_add_f32 v{26+c}, s62, v{26+c}")
        e(f"v_rsq_f32 v{26+c}, v{26+c}", "s_nop 0", f"v_mul_f32 v{26+c}, s63, v{26+c}", f"v_mul_f32 v{24+c}, -v{24+c}, v{26+c}")
    e("s_mov_b32 s3, 0xffff0000")
    for m in range(14):
        for c in range(2):
            for r in range(4):
                x = XN + (m * 2 + c) * 4 + r
                t = 28 + 2 * (r & 1)
                e(f"v_lshlrev_b32 v{t}, 16, v{x}", f"v_and_b32 v{t+1}, s3, v{x}",
                  f"v_fma_f32 v{t}, v{t}, v{26+c}, v{24+c}", f"v_fma_f32 v{t+1}, v{t+1}, v{26+c}, v{24+c}",
                  f"v_cvt_pk_bf16_f32 v{x}, v{t}, v{t+1}")
    def rdW(a, jj, slot, p):
        d = Y + 32 * p + 4 * a + 2 * jj
        return f"ds_read_b64_tr_b16 {vr(d,2)}, v{vW+a} offset:{slot*16384 + jj*2048}"
    def rdC(b, sp):
        return f"ds_read_b128 {vr(X + 4*(b&3),4)}, v{vC+sp} offset:{b*2048}"
    k.stamp(2)
    e("s_waitcnt vmcnt(20)", "s_barrier")
    k.stamp(3)
    for a in range(8):
        e(rdW(a, 0, 0, 0), rdW(a, 1, 0, 0))
    e(rdC(0, 0), rdC(1, 0))
    e("s_mov_b32 s50, 8")
    e("s_cmp_eq_u32 s37, 1", "s_cbranch_scc1 L1_loopV")
    wcnt = [3, 3, 3, 3, 2, 2, 0, 0]
    def kstep(n, isV):
        p = n & 1
        mf = []; fill = {}
        def add(g, *t): fill.setdefault(g, []).extend(t)
        wq = [(a, jj) for a in range(8) for jj in range(2)]
        dC, dW = dmaC(n & 1), dmaW(n & 3)
        for b in range(8):
            for ai in range(8):
                a = ai if b % 2 == 0 else 7 - ai
                wreg, creg = vr(Y + 32 * p + 4 * a, 4), vr(X + 4 * (b & 3), 4)
                if isV:
                    t = ar((b * 8 + a) * 4, 4); mf.append(f"v_mfma_f32_16x16x32_bf16 {t}, {creg}, {wreg}, {t}")
                else:
                    t = ar((a * 8 + b) * 4, 4); mf.append(f"v_mfma_f32_16x16x32_bf16 {t}, {wreg}, {creg}, {t}")
            g0 = b * 8
            add(g0 - 1, f"s_waitcnt lgkmcnt({wcnt[b-2] + 1 + wcnt[b-1]})")
            pos = g0
            if b == 0:
                add(pos, f"s_waitcnt vmcnt({12 if n & 1 else 16})", "s_barrier"); pos += 1
            if b < 6: add(pos, rdC(b + 2, n & 1))
            else: add(pos, rdC(b - 6, (n + 1) & 1))
            pos += 1
            for _ in range(wcnt[b]):
                a, jj = wq.pop(0)
                add(pos, rdW(a, jj, (n + 1) & 3, p ^ 1)); pos += 1
            d = dC if b < 4 else dW
            i = b & 3
            if i == 0: add(pos - 1, d[0])
            add(pos + (0 if b == 0 else 1), d[1 + i])
            if b == 5:
                if n & 1 == 0:
                    add(g0 + 7, "s_cmp_eq_u32 s54, s55", "s_cselect_b32 s52, s61, s60")
                else:
                    pass
            if b == 6:
                add(g0 + 4, f"v_add_u32 v{vC + (n & 1)}, s52, v{vC + (n & 1)}")
                if n & 1:
                    add(g0 + 5, "s_mov_b32 s53, s54", "s_add_u32 s54, s54, s52")
                    add(g0 + 6, "s_add_u32 s40, s40, 128", "s_add_u32 s41, s41, 128")
            if b == 7:
                add(g0 + 5, f"s_add_u32 s42, s42, {32*8192}")
        return mf, fill
    for isV in (0, 1):
        lab = "L1_loopV" if isV else "L1_loopK"
        k.label(lab)
        for n in range(4):
            mf, fill = kstep(n, isV)
            if n == 3:
                fill.setdefault(61, []).extend(["s_sub_u32 s50, s50, 1", "s_cmp_eq_u32 s50, 1"])
                fill.setdefault(62, []).extend([f"s_cselect_b32 s{sW}, s56, s{sW}", f"s_cselect_b32 s{sW+1}, s57, s{sW+1}", f"s_cselect_b32 s{sW+2}, s58, s{sW+2}",
                                                "s_cselect_b32 s42, 0, s42", f"s_cselect_b32 s{sC+2}, 0, s{sC+2}"])
                fill.setdefault(63, []).extend(["s_cmp_lg_u32 s50, 0", f"s_cbranch_scc1 {lab}"])
            e(*weave(mf, fill))
        if not isV: e("s_branch L1_epi")
    k.label("L1_epi")
    e("s_waitcnt vmcnt(4) lgkmcnt(0)", "s_barrier")
    k.stamp(4)
    for m in range(4, 10):
        e(f"s_add_u32 m0, s44, {m*16384}", "s_nop 0")
        e(*dmaW(0)[1:])
        e(f"s_add_u32 s42, s42, {32*8192}")
    e("s_lshl_b32 s3, s34, 8")
    for a in range(8): e(f"v_subrev_u32 v{vW+a}, s3, v{vW+a}")
    e("s_lshl_b32 s64, s35, 20", "s_lshl_b32 s3, s36, 17", "s_add_u32 s64, s64, s3", "s_lshl_b32 s3, s33, 16", "s_add_u32 s64, s64, s3")
    e("s_lshl_b32 s3, s37, 24", "s_add_u32 s64, s64, s3")
    e("s_add_u32 s3, s37, 12", "s_lshl_b32 s3, s34, s3", "s_add_u32 s64, s64, s3")
    e("s_movk_i32 s65, 1024", "s_movk_i32 s66, 8192", "s_movk_i32 s67, 16384")
    e("s_cmp_eq_u32 s37, 1", "s_cselect_b32 s66, s65, s66", "s_cselect_b32 s65, s67, s65")
    idx = 0
    for p in range(4):
        e("s_mov_b32 s67, s64")
        for j in range(8):
            t = EP + 16 * (idx & 1); idx += 1
            for h in range(2):
                for r in range(4):
                    e(f"v_accvgpr_read_b32 v{t + 4*h + r}, a{((2*p + h) * 8 + j) * 4 + r}")
            for q in range(4):
                e(f"v_cvt_pk_bf16_f32 v{t + 8 + q}, v{t + 2*q}, v{t + 2*q + 1}")
            e(f"buffer_store_dwordx4 {vr(t + 8, 4)}, v{vLane16}, s[{sO}:{sO+3}], s67 offen{ST}")
            e("s_add_u32 s67, s67, s66")
        e("s_add_u32 s64, s64, s65")
    e("s_waitcnt vmcnt(32)", "s_barrier")
    k.stamp(5)
    NR = 16
    LA = 6
    def rdQ(f, jj):
        m, j = divmod(f, 16)
        off = (m if m < 10 else m - 10) * 16384
        off &= 0xffff
        d = Y + 4 * (f % NR) + 2 * jj
        return f"ds_read_b64_tr_b16 {vr(d,2)}, v{vW + (j & 7)} offset:{off + (j >> 3) * 256 + jj * 2048}"
    mf = []; fill = {}
    def add(g, *t): fill.setdefault(g, []).extend(t)
    for f in range(LA): add(-1, rdQ(f, 0), rdQ(f, 1))
    NF = 14 * 16
    for f in range(NF):
        m, j = divmod(f, 16)
        for ci in range(2):
            c = ci if j % 2 == 0 else 1 - ci
            t = ar((j * 2 + c) * 4, 4)
            src = t if m else "0"
            mf.append(f"v_mfma_f32_16x16x32_bf16 {t}, {vr(Y + 4*(f % NR), 4)}, {vr(XN + (m*2+c)*4, 4)}, {src}")
        g0 = 2 * f
        nxt = f + LA
        if f % 2 == 0:
            rem = max(0, min(NF, f + LA) - (f + 2))
            add(g0 - 1, f"s_waitcnt lgkmcnt({2 * rem})")
        if nxt < NF:
            mn, jn = divmod(nxt, 16)
            if jn == 0 and mn in (4, 8):
                add(g0 - 1, *[f"v_add_u32 v{vW+a}, 0x10000, v{vW+a}" for a in range(8)])
            if jn == 0 and mn == 10:
                add(g0 - 1, *[f"v_subrev_u32 v{vW+a}, 0x20000, v{vW+a}" for a in range(8)])
                add(g0 - 1, "s_waitcnt vmcnt(0)", "s_barrier")
            add(g0, rdQ(nxt, 0)); add(g0 + 1, rdQ(nxt, 1))
        if f == 4 * 16 + 2:
            add(g0, "s_barrier")
        if 4 * 16 + 4 <= f < 4 * 16 + 4 + 32 and (f % 2 == 0):
            n = (f - (4 * 16 + 4)) // 2
            if n % 4 == 0: add(g0, f"s_mov_b32 m0, s{44 + n // 4}")
            add(g0 + 1, dmaW(0)[1 + n % 4])
            if n % 4 == 3: add(g0 + 2, f"s_add_u32 s42, s42, {32*8192}")
    e(*weave(mf, fill))
    k.stamp(6)
    e("s_lshl_b32 s64, s38, 20", "s_lshl_b32 s3, s39, 16", "s_add_u32 s64, s64, s3", "s_lshl_b32 s3, s32, 14", "s_add_u32 s64, s64, s3")
    e(f"s_add_u32 s64, s64, {hex(WS_Q)}", "s_nop 4")
    idx = 0
    for c in range(2):
        for t8 in range(8):
            t = EP + 16 * (idx & 1); idx += 1
            for h in range(2):
                for r in range(4):
                    e(f"v_accvgpr_read_b32 v{t + 4*h + r}, a{((2*t8 + h) * 2 + c) * 4 + r}")
            for q in range(4):
                e(f"v_cvt_pk_bf16_f32 v{t + 8 + q}, v{t + 2*q}, v{t + 2*q + 1}")
            if t8 % 4 == 0 and idx > 1: e("s_add_u32 s64, s64, 4096")
            e(f"buffer_store_dwordx4 {vr(t + 8, 4)}, v{vLane16}, s[{sO}:{sO+3}], s64 offen offset:{1024 * (t8 % 4)}{ST}")
    k.srd(4, 14, 128 * 128, add=WS_FLAG)
    e("s_lshl_b32 s3, s2, 7", "v_mov_b32 v2, s3", "v_mov_b32 v3, 0", "s_mov_b64 exec, 1")
    e("buffer_store_dword v3, v2, s[4:7], 0 offen", "s_mov_b64 exec, -1")
    k.dump_stamps(8, 14, 200 * MB)
    k.label("L1_done")
    e("s_endpgm")
    return k, 512, 256, 163840, 256, 256
```

```python
from asmlib import *
from k1 import MB, WS_K, WS_V, WS_Q, WS_C, WS_PART, WS_FLAG, WS_SIZE, f2u
WS_STAT = WS_PART + 16 * MB

def gen_k2(opt=None):
    opt = opt or {}
    k = K('k2_kernel'); e = k.e
    k.prof = opt.get('prof', False)
    THR = opt.get('thr', 65536.0)
    STF = opt.get('st', '')
    vL16, vB, vD, vLB = 1, 2, 3, 4
    vQ, vNM, vLs, vLU = 5, 7, 9, 11
    T = 13
    CI, S, E, P, EP, O = 16, 32, 64, 80, 96, 128
    aQ, aR, aP = 0, 64, 128
    sK, sV, sQ, sO = 8, 12, 16, 20
    NEG = -1e30
    ci = lambda kt, c: CI + (kt * 2 + c) * 4
    sreg = lambda par, kt, c: S + 16 * par + (kt * 2 + c) * 4
    ereg = lambda kt, c: E + (kt * 2 + c) * 4
    preg = lambda par, c: P + 8 * par + 4 * c
    oreg = lambda i, c: O + (i * 2 + c) * 4

    e("s_cmp_ge_u32 s2, 256", "s_cbranch_scc1 L2_done")
    k.stamp(0)
    e("s_load_dwordx2 s[4:5], s[0:1], 96")
    e("v_and_b32 v13, 63, v0", "v_lshrrev_b32 v14, 6, v0", f"v_lshlrev_b32 v{vL16}, 4, v13")
    e("v_readfirstlane_b32 s24, v14")
    e("s_and_b32 s3, s2, 7", "s_lshr_b32 s26, s2, 3", "s_and_b32 s25, s26, 1", "s_lshl_b32 s3, s3, 1", "s_add_u32 s25, s25, s3")
    e("s_lshr_b32 s26, s26, 1", "s_and_b32 s27, s26, 1", "s_lshr_b32 s26, s26, 1")
    e("s_sub_u32 s28, 15, s26")
    e("s_lshl_b32 s3, s26, 2", "s_sub_u32 s43, 30, s3")
    e("s_add_u32 s44, s3, 4")
    e("s_cmp_eq_u32 s27, 1")
    e("s_cselect_b32 s29, s43, 34", "s_cselect_b32 s30, 0, s43")
    e("s_sub_u32 s3, s43, 2", "s_cmp_eq_u32 s27, 1", "s_cselect_b32 s38, s3, -1")
    e("s_cselect_b32 s39, -1, 30")
    e("s_mov_b32 s31, 0")
    e("s_lshl_b32 s37, s24, 12")
    e(f"v_add_u32 v{vD}, s37, v{vL16}", f"v_subrev_u32 v{vLB}, s37, v{vL16}")
    e("s_waitcnt lgkmcnt(0)")
    e("s_lshl_b32 s3, s25, 20", "s_lshl_b32 s45, s30, 14", "s_add_u32 s45, s45, s3")
    e(f"s_add_u32 s{sK}, s4, s45", f"s_addc_u32 s{sK+1}, s5, 0", f"s_lshl_b32 s{sK+2}, s29, 14", f"s_mov_b32 s{sK+3}, 0x20000")
    e(f"s_add_u32 s{sV}, s{sK}, {hex(WS_V - 32768)}", f"s_addc_u32 s{sV+1}, s{sK+1}, 0", f"s_add_u32 s{sV+2}, s{sK+2}, 32768", f"s_mov_b32 s{sV+3}, 0x20000")
    e(f"s_add_u32 s3, s3, {hex(WS_Q)}", f"s_add_u32 s{sQ}, s4, s3", f"s_addc_u32 s{sQ+1}, s5, 0", f"s_mov_b32 s{sQ+2}, 0x100000", f"s_mov_b32 s{sQ+3}, 0x20000")
    k.srd(sO, 4, WS_SIZE)
    def qloads(sq):
        l = [f"s_lshl_b32 s46, s{sq}, 16", "s_lshl_b32 s47, s24, 14", "s_add_u32 s46, s46, s47"]
        for i in range(16):
            if i and i % 4 == 0: l.append("s_add_u32 s46, s46, 4096")
            l.append(f"buffer_load_dwordx4 {ar(aQ + 4*i, 4)}, v{vL16}, s[{sQ}:{sQ+3}], s46 offen offset:{1024*(i%4)}")
        return l
    e(*qloads(28))
    def dmaK(): return ["s_mov_b32 m0, s35"] + [f"buffer_load_dwordx4 v{vD}, s[{sK}:{sK+3}], s32 offen offset:{1024*i} lds" for i in range(4)] + ["s_add_u32 s32, s32, 16384"]
    def dmaV(): return ["s_add_u32 m0, s35, 16384"] + [f"buffer_load_dwordx4 v{vD}, s[{sV}:{sV+3}], s33 offen offset:{1024*i} lds" for i in range(4)] + ["s_add_u32 s33, s33, 16384"]
    e("s_mov_b32 s32, 0", "s_mov_b32 s33, 32768", "s_mov_b32 s35, s37")
    for st in range(4):
        for d in ((dmaK(), dmaV()) if st >= 2 else (dmaK(),)): e(d[0], "s_nop 0", *d[1:])
        e("s_add_u32 s35, s35, 32768")
    e("s_mov_b32 s34, s37", f"s_add_u32 s36, s37, {5*32768}")
    e(f"v_mov_b32 v{vB}, v{vL16}")
    e(f"s_mov_b32 s48, {hex(f2u(THR))}")
    e("s_waitcnt vmcnt(20)", "s_barrier")
    k.stamp(1)

    uid = [0]
    def rd(f, part):
        return f"ds_read_b128 {ar(aR + 4*f, 4)}, v{vB} offset:{part*16384 + f*1024}"
    def kfrag(f):
        t, kt = divmod(f, 2); return kt * 8 + t
    def rdK(f): return f"ds_read_b128 {ar(aR + 4*f, 4)}, v{vB} offset:{kfrag(f)*1024}"
    def rdV(f): return rd(f, 1)

    def maskblock(lab):
        l = [f"{lab}:", "s_mov_b32 s39, 0", f"v_mov_b32 v{T+2}, {hex(f2u(NEG))}"]
        for c in range(2):
            l.append(f"v_subrev_u32 v{T}, s40, v{vQ+c}")
            for i in range(8):
                l.append(f"v_cmp_le_i32 s[{52+2*i}:{53+2*i}], {16*(i//4) + i%4}, v{T}")
            for i in range(8):
                l.append(f"v_cndmask_b32 v{ci(i//4, c) + i%4}, v{T+2}, v{vNM+c}, s[{52+2*i}:{53+2*i}]")
        l += ["s_add_u32 s40, s40, 32", "s_nop 0", f"s_branch {lab}_ret"]
        return l
    def switchblock(lab):
        return [f"{lab}:", "s_mov_b32 s32, 0", "s_mov_b32 s33, 0", f"s_lshl_b32 s{sK+2}, s44, 14", f"s_add_u32 s{sV+2}, s{sK+2}, 32768", f"s_branch {lab}_ret"]
    def rowmax(par):
        l = []
        for c in range(2):
            a, b = sreg(par, 0, c), sreg(par, 1, c)
            l += [f"v_max3_f32 v{T+c}, v{a}, v{a+1}, v{a+2}", f"v_max3_f32 v{T+c}, v{T+c}, v{a+3}, v{b}",
                  f"v_max3_f32 v{T+c}, v{T+c}, v{b+1}, v{b+2}", f"v_max_f32 v{T+c}, v{T+c}, v{b+3}"]
        for sw in ("v_permlane32_swap_b32", "v_permlane16_swap_b32"):
            l += [f"v_mov_b32 v{EP}, v{T}", f"v_mov_b32 v{EP+1}, v{T+1}", "s_nop 1", f"{sw} v{T}, v{EP}", f"{sw} v{T+1}, v{EP+1}",
                  f"v_max_f32 v{T}, v{T}, v{EP}", f"v_max_f32 v{T+1}, v{T+1}, v{EP+1}"]
        return l
    def shift(regs_by_c):
        return [f"v_sub_f32 v{r}, v{r}, v{T+c}" for c in range(2) for r in regs_by_c(c)]
    def quads(fn, c): return [fn(kt, c) + r for kt in range(2) for r in range(4)]
    def smops(par):
        ops = []
        for c in range(2):
            src = quads(lambda kt, c: sreg(par, kt, c), c); dst = quads(ereg, c)
            seq = []
            for i in range(8):
                seq.append(('x', f"v_exp_f32 v{dst[i]}, v{src[i]}"))
                if i == 2: seq.append(('v', f"v_add_f32 v{vLU+c}, v{dst[0]}, v{dst[1]}"))
                if i >= 3: seq.append(('v', f"v_add_f32 v{vLU+c}, v{vLU+c}, v{dst[i-1]}"))
                if i in (2, 4, 6): seq.append(('v', f"v_cvt_pk_bf16_f32 v{preg(par,c) + i//2 - 1}, v{dst[i-2]}, v{dst[i-1]}"))
            tail = [('v', f"v_add_f32 v{vLU+c}, v{vLU+c}, v{dst[7]}"), ('v', f"v_cvt_pk_bf16_f32 v{preg(par,c) + 3}, v{dst[6]}, v{dst[7]}")]
            if c == 0: ops += seq; pend = tail
            else: ops += seq[:1] + pend + seq[1:] + [('v', "s_nop 0")] + tail
        return ops
    rare_blocks = []
    def rare(par, lab, hasQK):
        l = [f"{lab}:", "s_nop 7", "s_nop 3"]
        l += rowmax(par)
        l += [f"v_max_f32 v{T}, 0, v{T}", f"v_max_f32 v{T+1}, 0, v{T+1}"]
        l += shift(lambda c: quads(lambda kt, c: sreg(par, kt, c), c))
        if hasQK: l += shift(lambda c: quads(lambda kt, c: sreg(par ^ 1, kt, c), c))
        l += shift(lambda c: quads(ci, c)) + shift(lambda c: [vNM + c])
        l += [f"v_exp_f32 v{T}, -v{T}", f"v_exp_f32 v{T+1}, -v{T+1}", "s_nop 0"]
        for c in range(2):
            l.append(f"v_mul_f32 v{vLs+c}, v{vLs+c}, v{T+c}")
            for i in range(16):
                for r in range(4): l.append(f"v_mul_f32 v{oreg(i,c)+r}, v{oreg(i,c)+r}, v{T+c}")
        l += [t for _, t in smops(par)]
        l += ["s_nop 1", f"s_branch {lab}_ret"]
        return l

    def step(name, hasPV, hasQK, hasSM, nxt, par, extra=None, vm=24, firstPV=False):
        uid[0] += 1; u = uid[0]
        mf = []; reads = []
        if hasPV:
            for i in range(16):
                for cc in range(2):
                    c = cc if i % 2 == 0 else 1 - cc
                    o = vr(oreg(i, c), 4)
                    mf.append(f"v_mfma_f32_16x16x32_bf16 {o}, {ar(aR + 4*i, 4)}, {vr(preg(par^1, c), 4)}, {o}")
            reads += [rdV(f) for f in range(16)]
        q0 = len(mf)
        if hasQK:
            for f in range(16):
                t, kt = divmod(f, 2)
                for cc in range(2):
                    c = cc if kt == 0 else 1 - cc
                    d = vr(sreg(par ^ 1, kt, c), 4)
                    src = vr(ci(kt, c), 4) if t == 0 else d
                    mf.append(f"v_mfma_f32_16x16x32_bf16 {d}, {ar(aR + 4*f, 4)}, {ar(aQ + (c*8+t)*4, 4)}, {src}")
            reads += [rdK(f) for f in range(16)]
        nM = len(mf); nF = nM // 2
        fill = {}; cost = {}
        def add(g, t, w=1):
            fill.setdefault(g, []).append(t); cost[g] = cost.get(g, 0) + w
        Bg = nM - 17
        own = list(range(8, nF)); span = Bg - 6
        rgap = {}
        for i, f in enumerate(own):
            g = (i * span) // max(1, len(own) - 1) if len(own) > 8 else i
            g = max(g, 2 * f - 31)
            rgap[f] = g
        for f in range(0, nF, 4):
            last = f + 3
            if 2 * f - 1 >= Bg:
                continue
            if last < 8: young = (7 - last) + sum(1 for x in own if rgap[x] <= 2 * f - 2)
            else: young = sum(1 for x in own if x > last and rgap[x] <= 2 * f - 2)
            add(2 * f - 1, f"s_waitcnt lgkmcnt({min(15, young)})")
        for f in own: add(rgap[f], reads[f])
        add(0, "s_sub_u32 s38, s38, 1"); add(0, f"s_cbranch_scc1 L2_sw{u}"); add(0, f"L2_sw{u}_ret:", 0)
        rare_blocks.extend(switchblock(f"L2_sw{u}"))
        dm = dmaK() + dmaV()
        if nM == 64: pos = [2, 3, 8, 13, 18, 19, 22, 23, 28, 34, 39, 40]
        else: pos = [1, 2, 3, 4, 5, 6, 7, 8, 9, 10, 11, 12]
        for g, t in zip(pos, dm): add(g, t)
        if hasQK:
            g = q0 - 1
            add(g, "s_sub_u32 s39, s39, 1"); add(g, f"s_cbranch_scc1 L2_mk{u}"); add(g, f"L2_mk{u}_ret:", 0)
            rare_blocks.extend(maskblock(f"L2_mk{u}"))
        add(Bg - 2, "s_mov_b32 s35, s34"); add(Bg - 2, "s_add_u32 s34, s34, 32768")
        add(Bg - 1, "s_cmp_eq_u32 s34, s36"); add(Bg - 1, "s_cselect_b32 s34, s37, s34")
        add(Bg, f"s_waitcnt vmcnt({vm}) lgkmcnt(0)"); add(Bg, "s_barrier"); add(Bg, f"v_add_u32 v{vB}, s34, v{vLB}")
        if nxt:
            for f in range(8): add(Bg + 1 + 2 * f, rdK(f) if nxt == 'K' else rdV(f))
        for g, t in (extra or []): add(g, t)
        if hasSM:
            ops = smops(par) + [('v', f"v_add_f32 v{T}, v{vLU}, v{vLU+1}"), ('v', f"v_cmp_lt_f32 vcc, s48, v{T}")]
            g = 3 if not hasPV else 3
            end = nM - 2
            total = sum(2 if kd == 'x' else 1 for kd, _ in ops)
            cap = 2
            free = sum(max(0, cap - cost.get(x, 0)) for x in range(g, end))
            while free < total:
                cap += 1
                free = sum(max(0, cap - cost.get(x, 0)) for x in range(g, end))
            budget = 0.0; rate = total / free
            i = 0
            for x in range(g, end):
                budget += max(0, cap - cost.get(x, 0)) * rate
                while i < len(ops) and budget >= (2 if ops[i][0] == 'x' else 1) - 0.5:
                    w = 2 if ops[i][0] == 'x' else 1
                    add(x, ops[i][1], w); budget -= w; i += 1
            while i < len(ops): add(end, ops[i][1]); i += 1
            add(nM - 1, f"s_cbranch_vccnz L2_rare{u}"); add(nM - 1, f"L2_rare{u}_ret:", 0)
            add(nM - 1, f"v_add_f32 v{vLs}, v{vLs}, v{vLU}"); add(nM - 1, f"v_add_f32 v{vLs+1}, v{vLs+1}, v{vLU+1}")
            rare_blocks.extend(rare(par, f"L2_rare{u}", hasQK))
        return weave(mf, fill)

    k.label("L2_seg")
    e("v_and_b32 v13, 15, v0", "v_bfe_u32 v14, v0, 4, 2", "v_lshlrev_b32 v14, 2, v14", "v_sub_u32 v13, v13, v14")
    e("s_lshl_b32 s40, s28, 7", "s_lshl_b32 s3, s24, 5", "s_add_u32 s3, s3, s40")
    e(f"v_add_u32 v{vQ}, s3, v13", f"v_add_u32 v{vQ+1}, 16, v{vQ}")
    for f in range(8): e(rdK(f))
    for r in list(range(vNM, vNM + 4)) + list(range(CI, CI + 16)) + list(range(O, O + 128)): e(f"v_mov_b32 v{r}, 0")
    e(*step("PRO", 0, 1, 0, 'K', 1))
    e("s_nop 7")
    e(*rowmax(0))
    e(*shift(lambda c: quads(lambda kt, c: sreg(0, kt, c), c)), *shift(lambda c: quads(ci, c)), *shift(lambda c: [vNM + c]))
    e("s_sub_u32 s42, s29, 2", "s_lshr_b32 s42, s42, 1")
    e(*step("F", 0, 1, 1, 'V', 0, vm=16))
    e("s_cmp_eq_u32 s31, 1", "s_cbranch_scc0 L2_noflag", "s_cmp_eq_u32 s24, 0", "s_cbranch_scc0 L2_noflag")
    e("s_lshl_b32 s3, s25, 3", "s_add_u32 s3, s3, s26", "s_lshl_b32 s3, s3, 7", f"s_add_u32 s3, s3, {hex(WS_FLAG)}")
    e(f"v_mov_b32 v{T}, 0", f"v_mov_b32 v{T+1}, 1", "s_mov_b64 exec, 1", f"buffer_store_dword v{T+1}, v{T}, s[{sO}:{sO+3}], s3 offen sc1", "s_mov_b64 exec, -1")
    k.label("L2_noflag")
    e("s_sub_u32 s42, s42, 1", "s_cbranch_scc1 L2_tail")
    k.label("L2_loop")
    e(*step("M1", 1, 1, 1, 'V', 1))
    e(*step("M0", 1, 1, 1, 'V', 0))
    e("s_sub_u32 s42, s42, 1", "s_cbranch_scc0 L2_loop")
    k.label("L2_tail")
    e("s_cmp_eq_u32 s27, 1", "s_cbranch_scc0 L2_noq", "s_cmp_eq_u32 s31, 0", "s_cbranch_scc0 L2_noq")
    e(*qloads(26))
    k.label("L2_noq")
    e(*step("L", 1, 0, 1, 'V', 1))
    e(*step("EPI", 1, 0, 0, None, 0))
    k.stamp(2)
    for sw in ("v_permlane32_swap_b32", "v_permlane16_swap_b32"):
        e(f"v_mov_b32 v{EP}, v{vLs}", f"v_mov_b32 v{EP+1}, v{vLs+1}", "s_nop 1", f"{sw} v{vLs}, v{EP}", f"{sw} v{vLs+1}, v{EP+1}",
          f"v_add_f32 v{vLs}, v{vLs}, v{EP}", f"v_add_f32 v{vLs+1}, v{vLs+1}, v{EP+1}")
    e(f"v_log_f32 v{vLU}, v{vLs}", f"v_log_f32 v{vLU+1}, v{vLs+1}", f"v_rcp_f32 v{vLs}, v{vLs}", f"v_rcp_f32 v{vLs+1}, v{vLs+1}")
    e(f"v_sub_f32 v{vLU}, v{vLU}, v{vNM}", f"v_sub_f32 v{vLU+1}, v{vLU+1}, v{vNM+1}")
    e("s_lshl_b32 s49, s25, 3", "s_add_u32 s49, s49, s26")
    e("s_lshl_b32 s50, s49, 16", "s_lshl_b32 s3, s24, 14", "s_add_u32 s50, s50, s3", f"s_add_u32 s50, s50, {hex(WS_PART)}")
    e("s_lshl_b32 s51, s49, 12", "s_lshl_b32 s3, s24, 10", "s_add_u32 s51, s51, s3", f"s_add_u32 s51, s51, {hex(WS_STAT)}")
    e("s_lshl_b32 s52, s28, 20", "s_lshl_b32 s3, s24, 18", "s_add_u32 s52, s52, s3", "s_lshl_b32 s3, s25, 13", "s_add_u32 s52, s52, s3", f"s_add_u32 s52, s52, {hex(WS_C)}")
    def outloop(merge, flags):
        idx = 0
        for c in range(2):
            for t in range(8):
                b = EP + 12 * (idx & 1); idx += 1
                for h in range(2):
                    for r in range(4):
                        x = b + 4 * h + r
                        if merge:
                            j = (c * 8 + t) * 4 + 2 * h + r // 2
                            if r % 2 == 0: e(f"v_accvgpr_read_b32 v{T+2}, a{aP + j}", f"v_lshlrev_b32 v{x}, 16, v{T+2}", f"v_and_b32 v{x+1}, s53, v{T+2}")
                            e(f"v_mul_f32 v{x}, v{x}, v{T+c}", f"v_fma_f32 v{x}, v{oreg(2*t+h, c)+r}, v{vLs+c}, v{x}")
                        else:
                            e(f"v_mul_f32 v{x}, v{oreg(2*t+h, c)+r}, v{vLs+c}")
                for q in range(4): e(f"v_cvt_pk_bf16_f32 v{b+8+q}, v{b+2*q}, v{b+2*q+1}")
                if t == 4: e("s_add_u32 s52, s52, 4096")
                e(f"buffer_store_dwordx4 {vr(b+8,4)}, v{vL16}, s[{sO}:{sO+3}], s52 offen offset:{1024*(t%4)}{flags}")
            if c == 0: e("s_add_u32 s52, s52, s54")
    e("s_cmp_eq_u32 s27, 0", "s_cbranch_scc1 L2_merge")
    e("s_cmp_eq_u32 s31, 1", "s_cbranch_scc1 L2_final")
    e("s_mov_b32 s52, s50", "s_movk_i32 s54, 4096")
    e(f"buffer_store_dwordx2 {vr(vLU,2)}, v{vL16}, s[{sO}:{sO+3}], s51 offen sc1") if False else None
    e(f"v_mov_b32 v{EP+24}, v{vLU}", f"v_mov_b32 v{EP+25}, v{vLU+1}")
    e(f"buffer_store_dwordx2 {vr(EP+24,2)}, v{vL16}, s[{sO}:{sO+3}], s51 offen sc1")
    outloop(False, " sc1")
    e("s_mov_b32 s31, 1", "s_mov_b32 s28, s26", "s_mov_b32 s29, s44", "s_sub_u32 s39, s44, 4")
    e("s_waitcnt vmcnt(25)", "s_branch L2_seg")
    k.label("L2_final")
    e(f"s_mov_b32 s54, {hex(128*1024 - 4096)}")
    outloop(False, STF)
    e("s_branch L2_end")
    k.label("L2_merge")
    e("s_lshl_b32 s3, s49, 7", f"s_add_u32 s3, s3, {hex(WS_FLAG)}", f"v_mov_b32 v{T}, 0", "s_mov_b32 s55, 0x400000")
    k.label("L2_poll")
    e(f"buffer_load_dword v{T+1}, v{T}, s[{sO}:{sO+3}], s3 offen sc1", "s_waitcnt vmcnt(0)", f"v_readfirstlane_b32 s53, v{T+1}")
    e("s_cmp_eq_u32 s53, 1", "s_cbranch_scc1 L2_got", "s_sleep 2", "s_sub_u32 s55, s55, 1", "s_cbranch_scc0 L2_poll")
    k.label("L2_got")
    e(f"buffer_load_dwordx2 {vr(EP+24,2)}, v{vL16}, s[{sO}:{sO+3}], s51 offen sc1")
    for i in range(16):
        if i and i % 4 == 0: e("s_add_u32 s50, s50, 4096")
        e(f"buffer_load_dwordx4 {ar(aP + 4*i, 4)}, v{vL16}, s[{sO}:{sO+3}], s50 offen offset:{1024*(i%4)} sc1")
    e("s_mov_b32 s53, 0xffff0000", f"s_mov_b32 s54, {hex(128*1024 - 4096)}")
    e("s_waitcnt vmcnt(16)")
    for c in range(2):
        e(f"v_sub_f32 v{EP+c}, v{EP+24+c}, v{vLU+c}")
        e(f"v_exp_f32 v{EP+2+c}, v{EP+c}", f"v_exp_f32 v{EP+4+c}, -v{EP+c}", "s_nop 0")
        e(f"v_add_f32 v{EP+2+c}, 1.0, v{EP+2+c}", f"v_add_f32 v{EP+4+c}, 1.0, v{EP+4+c}")
        e(f"v_rcp_f32 v{EP+2+c}, v{EP+2+c}", f"v_rcp_f32 v{T+c}, v{EP+4+c}", "s_nop 0")
        e(f"v_mul_f32 v{vLs+c}, v{vLs+c}, v{EP+2+c}")
    e("s_waitcnt vmcnt(0)")
    outloop(True, STF)
    k.label("L2_end")
    k.dump_stamps(4, 4, 200 * MB) if not opt.get('nodump') else None
    k.label("L2_done")
    e("s_endpgm")
    e(*rare_blocks)
    return k, 448, 256, 163840, 256, 256
```

```python
from asmlib import *
from k1 import MB, WS_C, WS_H, WS_HH, WS_SIZE, f2u

def ln_block(e, XN, scale, a=24):
    e("v_mov_b32 v22, 0x3f803f80")
    e("v_mov_b32 v24, 0", "v_mov_b32 v25, 0", "v_mov_b32 v26, 0", "v_mov_b32 v27, 0")
    for m in range(14):
        for r in range(4):
            for c in range(2):
                x = XN + (m * 2 + c) * 4 + r
                e(f"v_dot2c_f32_bf16 v{24+c}, v{x}, v22", f"v_dot2c_f32_bf16 v{26+c}, v{x}, v{x}")
    e("s_nop 2")
    for sw in ("v_permlane32_swap_b32", "v_permlane16_swap_b32"):
        for R in (24, 25, 26, 27): e(f"v_mov_b32 v{R+4}, v{R}")
        e("s_nop 1")
        for R in (24, 25, 26, 27): e(f"{sw} v{R}, v{R+4}")
        for R in (24, 25, 26, 27): e(f"v_add_f32 v{R}, v{R}, v{R+4}")
    e(f"s_mov_b32 s3, {hex(f2u(1.0/448))}", f"s_mov_b32 s62, {hex(f2u(1e-5))}", f"s_mov_b32 s63, {hex(f2u(scale))}")
    for c in range(2):
        e(f"v_mul_f32 v{24+c}, s3, v{24+c}", f"v_mul_f32 v{26+c}, s3, v{26+c}")
        e(f"v_fma_f32 v{26+c}, -v{24+c}, v{24+c}, v{26+c}", f"v_max_f32 v{26+c}, 0, v{26+c}", f"v_add_f32 v{26+c}, s62, v{26+c}")
        e(f"v_rsq_f32 v{26+c}, v{26+c}", "s_nop 0", f"v_mul_f32 v{26+c}, s63, v{26+c}", f"v_mul_f32 v{24+c}, -v{24+c}, v{26+c}")
    e("s_mov_b32 s3, 0xffff0000")
    for m in range(14):
        for c in range(2):
            for r in range(4):
                x = XN + (m * 2 + c) * 4 + r
                t = 28 + 2 * (r & 1)
                e(f"v_lshlrev_b32 v{t}, 16, v{x}", f"v_and_b32 v{t+1}, s3, v{x}",
                  f"v_fma_f32 v{t}, v{t}, v{26+c}, v{24+c}", f"v_fma_f32 v{t+1}, v{t+1}, v{26+c}, v{24+c}",
                  f"v_cvt_pk_bf16_f32 v{x}, v{t}, v{t+1}")

def gen_proj(which, opt=None):
    opt = opt or {}
    k = K(f'k{which}_kernel'); e = k.e
    k.prof = opt.get('prof', False)
    L = f"L{which}"
    NS = 32 if which == 3 else 14
    TT = NS * 4
    Aoff = WS_C if which == 3 else WS_HH
    D = 7; RS = 8
    vL16, vA, vDW, vR = 1, 2, 4, 8
    WF, ACC, AR = 16, 48, 128
    sA, sW, sX, sO = 8, 12, 16, 20
    e("s_cmp_ge_u32 s2, 224", f"s_cbranch_scc1 {L}_done")
    k.stamp(0)
    e(f"s_load_dwordx2 s[4:5], s[0:1], 96", f"s_load_dwordx2 s[6:7], s[0:1], {40 if which == 3 else 72}",
      f"s_load_dwordx2 s[24:25], s[0:1], {0 if which == 3 else 80}")
    e("v_and_b32 v12, 63, v0", "v_lshrrev_b32 v13, 6, v0", f"v_lshlrev_b32 v{vL16}, 4, v12")
    e("v_readfirstlane_b32 s26, v13")
    e("s_and_b32 s3, s2, 7", "s_lshr_b32 s27, s2, 3")
    e("s_mul_i32 s28, s27, 37", "s_lshr_b32 s28, s28, 8")
    e("s_mul_i32 s29, s28, 7", "s_sub_u32 s29, s27, s29")
    e("s_lshl_b32 s3, s3, 2", "s_add_u32 s28, s28, s3")
    e("v_lshrrev_b32 v13, 3, v12", "v_mul_u32_u24 v13, 896, v13", "v_lshrrev_b32 v14, 4, v12", "v_lshlrev_b32 v14, 1, v14",
      "v_and_b32 v15, 7, v12", "v_xor_b32 v14, v14, v15", f"v_lshl_add_u32 v{vDW}, v14, 4, v13")
    for i in range(1, 4): e(f"v_add_u32 v{vDW+i}, {6144*i}, v{vDW}")
    e("v_and_b32 v13, 15, v12", "v_lshrrev_b32 v14, 4, v12", "v_lshrrev_b32 v15, 2, v13", "v_lshl_add_u32 v14, v14, 2, v15")
    e("v_and_b32 v13, 3, v13", "v_lshlrev_b32 v13, 3, v13", "v_lshl_add_u32 v13, v14, 7, v13", "s_lshl_b32 s30, s26, 15", "v_add_u32 v13, s30, v13")
    e("v_bfe_u32 v14, v14, 1, 2")
    for a in range(4): e(f"v_xor_b32 v15, {a}, v14", f"v_lshl_add_u32 v{vR+a}, v15, 5, v13")
    e("s_waitcnt lgkmcnt(0)")
    e(f"s_mul_i32 s31, s28, {4*TT*1024}", f"s_mul_i32 s3, s26, {NS*1024}", "s_add_u32 s31, s31, s3", f"s_add_u32 s31, s31, {hex(Aoff)}")
    e(f"s_add_u32 s{sA}, s4, s31", f"s_addc_u32 s{sA+1}, s5, 0", f"s_mov_b32 s{sA+2}, {hex(3*TT*1024 + NS*1024)}", f"s_mov_b32 s{sA+3}, 0x20000")
    e(f"s_mul_i32 s31, s26, {NS*32*896}", "s_lshl_b32 s3, s29, 7", "s_add_u32 s31, s31, s3")
    e(f"s_add_u32 s{sW}, s6, s31", f"s_addc_u32 s{sW+1}, s7, 0", f"s_sub_u32 s{sW+2}, {TT*32*896}, s31", f"s_mov_b32 s{sW+3}, 0x20000")
    for b in range(4): e(f"s_mov_b32 s{32+b}, {b*TT*1024}")
    e("s_mov_b32 s36, 0")
    def loads(n):
        sl = n % RS
        l = [f"s_add_u32 m0, s30, {sl*4096}"]
        off = (n % 4) * 1024
        if n and n % 4 == 0: l += [f"s_add_u32 s{32+b}, s{32+b}, 4096" for b in range(4)]
        else: l += ["s_nop 0"]
        l += [f"buffer_load_dwordx4 v{vDW+i}, s[{sW}:{sW+3}], s36 offen offset:{1024*i} lds" for i in range(4)]
        l += [f"buffer_load_dwordx4 {vr(AR + 16*sl + 4*b, 4)}, v{vL16}, s[{sA}:{sA+3}], s{32+b} offen offset:{off}" for b in range(4)]
        l += [f"s_add_u32 s36, s36, {32*896}"]
        return l
    def trs(n):
        return [f"ds_read_b64_tr_b16 {vr(WF + 16*(n&1) + 4*a + 2*jj, 2)}, v{vR+a} offset:{(n%RS)*4096 + jj*2048}" for a in range(4) for jj in range(2)]
    for n in range(min(D, NS)): e(*loads(n))
    e(f"s_waitcnt vmcnt({8*(min(D,NS)-1)})")
    k.stamp(1)
    e(*trs(0))
    for n in range(NS):
        mf = []
        for a in range(4):
            for bi in range(4):
                b = bi if a % 2 == 0 else 3 - bi
                t = vr(ACC + (a * 4 + b) * 4, 4)
                mf.append(f"v_mfma_f32_16x16x32_bf16 {t}, {vr(WF + 16*(n&1) + 4*a, 4)}, {vr(AR + 16*(n%RS) + 4*b, 4)}, {t if n else 0}")
        fill = {-1: ["s_waitcnt lgkmcnt(0)"]}
        issued = min(NS, n + D)
        if n + 1 < NS:
            fill[0] = [f"s_waitcnt vmcnt({8*(issued - (n + 2))})"]
            for i, t in enumerate(trs(n + 1)): fill.setdefault(i // 2 + 0, []).append(t)
        if n + D < NS:
            for i, t in enumerate(loads(n + D)): fill.setdefault(4 + (i * 11) // 14, []).append(t)
        e(*weave(mf, fill))
    k.stamp(2)
    if which == 3:
        k.srd(sX, 24, 2048 * 896)
        e("v_and_b32 v13, 15, v0", "v_bfe_u32 v14, v0, 4, 2", "s_lshl_b32 s3, s28, 6", "s_lshl_b32 s31, s26, 4", "s_add_u32 s3, s3, s31")
        e("v_add_u32 v13, s3, v13", "v_mul_u32_u24 v13, 896, v13", "v_lshl_add_u32 v13, v14, 3, v13", "s_lshl_b32 s31, s29, 7")
        for a in range(4): e(f"buffer_load_dwordx2 {vr(AR + 2*a, 2)}, v13, s[{sX}:{sX+3}], s31 offen offset:{32*a}")
        k.srd(sO, 4, 128 * 14 * 1024, add=WS_H)
    else:
        k.srd(sX, 4, 128 * 14 * 1024, add=WS_H)
        e("s_lshl_b32 s3, s28, 2", "s_add_u32 s3, s3, s26", "s_mul_i32 s3, s3, 14", "s_lshl_b32 s31, s29, 1", "s_add_u32 s3, s3, s31", "s_lshl_b32 s31, s3, 10")
        for t in range(2): e(f"buffer_load_dwordx4 {vr(AR + 4*t, 4)}, v{vL16}, s[{sX}:{sX+3}], s31 offen offset:{1024*t}")
        k.srd(sO, 24, 2048 * 896)
    e("s_barrier")
    e("s_lshl_b32 s3, s26, 14", f"v_add_u32 v12, s3, v{vL16}")
    for a in range(4):
        for b in range(4):
            e(f"ds_write_b128 v12, {vr(ACC + (a*4+b)*4, 4)} offset:{(a*4+b)*1024}")
    e("s_lshl_b32 s3, s26, 10", f"v_add_u32 v12, s3, v{vL16}")
    e("s_waitcnt lgkmcnt(0)", "s_barrier")
    for sw in range(4):
        for a in range(4):
            e(f"ds_read_b128 {vr(ACC + (sw*4+a)*4, 4)}, v12 offset:{sw*16384 + a*4096}")
    e("s_mov_b32 s33, 0xffff0000")
    e("s_waitcnt vmcnt(0) lgkmcnt(0)")
    for a in range(4):
        for r in range(4):
            x = ACC + a * 4 + r
            e(f"v_add_f32 v{x}, v{x}, v{x+16}", f"v_add_f32 v{x+32}, v{x+32}, v{x+48}")
        for r in range(4):
            x = ACC + a * 4 + r
            src = AR + 2 * a + r // 2
            e(f"v_lshlrev_b32 v{WF+r}, 16, v{src}" if r % 2 == 0 else f"v_and_b32 v{WF+r}, s33, v{src}")
            e(f"v_add_f32 v{x}, v{x}, v{x+32}")
        for r in range(4):
            x = ACC + a * 4 + r
            e(f"v_add_f32 v{x}, v{x}, v{WF+r}")
        e(f"v_cvt_pk_bf16_f32 v{WF + 8 + 2*a}, v{ACC+a*4}, v{ACC+a*4+1}", f"v_cvt_pk_bf16_f32 v{WF + 9 + 2*a}, v{ACC+a*4+2}, v{ACC+a*4+3}")
    if which == 3:
        e("s_lshl_b32 s3, s28, 2", "s_add_u32 s3, s3, s26", "s_mul_i32 s3, s3, 14", "s_lshl_b32 s31, s29, 1", "s_add_u32 s3, s3, s31", "s_lshl_b32 s31, s3, 10")
        for t in range(2): e(f"buffer_store_dwordx4 {vr(WF + 8 + 4*t, 4)}, v{vL16}, s[{sO}:{sO+3}], s31 offen offset:{1024*t}")
    else:
        e("v_and_b32 v13, 15, v0", "v_bfe_u32 v14, v0, 4, 2", "s_lshl_b32 s3, s28, 6", "s_lshl_b32 s31, s26, 4", "s_add_u32 s3, s3, s31")
        e("v_add_u32 v13, s3, v13", "v_mul_u32_u24 v13, 896, v13", "v_lshl_add_u32 v13, v14, 3, v13", "s_lshl_b32 s31, s29, 7")
        for a in range(4): e(f"buffer_store_dwordx2 {vr(WF + 8 + 2*a, 2)}, v13, s[{sO}:{sO+3}], s31 offen offset:{32*a}")
    k.dump_stamps(4, 4, 200 * MB)
    k.label(f"{L}_done")
    e("s_endpgm")
    return k, 256, 256, 131072, 224, 256

def gen_k4(opt=None):
    opt = opt or {}
    k = K('k4_kernel'); e = k.e
    k.prof = opt.get('prof', False)
    vL16, vW, vDW = 1, 2, 16
    Y, XN, EP = 32, 112, 224
    sG, sU, sX, sO = 8, 12, 16, 20
    e("s_cmp_ge_u32 s2, 224", "s_cbranch_scc1 L4_done")
    k.stamp(0)
    e("s_load_dwordx2 s[4:5], s[0:1], 96", "s_load_dwordx4 s[24:27], s[0:1], 56")
    e("v_and_b32 v22, 63, v0", "v_lshrrev_b32 v23, 6, v0", f"v_lshlrev_b32 v{vL16}, 4, v22")
    e("v_readfirstlane_b32 s32, v23")
    e("v_and_b32 v24, 15, v22", "v_lshrrev_b32 v25, 4, v22")
    e("s_and_b32 s3, s2, 7", "s_lshr_b32 s33, s2, 3")
    e("s_cmp_ge_u32 s33, 14", "s_cselect_b32 s34, 1, 0", "s_mul_i32 s35, s34, 14", "s_sub_u32 s35, s33, s35")
    e("s_lshl_b32 s3, s3, 1", "s_add_u32 s34, s34, s3")
    e("s_waitcnt lgkmcnt(0)")
    k.srd(sX, 4, 128 * 14 * 1024, add=WS_H)
    e("s_lshl_b32 s3, s34, 3", "s_lshl_b32 s36, s32, 1", "s_add_u32 s36, s36, s3")
    e("s_mul_i32 s37, s36, 14336")
    for c in range(2):
        for m in range(14):
            if m % 4 == 0 and (m or c): e(f"s_add_u32 s37, s37, {4096 if m else 2048}")
            e(f"buffer_load_dwordx4 {vr(XN + (m*2+c)*4, 4)}, v{vL16}, s[{sX}:{sX+3}], s37 offen offset:{1024*(m%4)}")
    e("s_lshl_b32 s3, s35, 8")
    for S, P in ((sG, 24), (sU, 26)):
        e(f"s_add_u32 s{S}, s{P}, s3", f"s_addc_u32 s{S+1}, s{P+1}, 0", f"s_sub_u32 s{S+2}, {448*3584}, s3", f"s_mov_b32 s{S+3}, 0x20000")
    k.srd(sO, 4, 128 * 56 * 1024, add=WS_HH)
    e("s_lshl_b32 s3, s32, 3", "v_add_u32 v26, s3, v25", "v_mul_u32_u24 v26, 3584, v26")
    e("v_lshlrev_b32 v27, 1, v25", "v_xor_b32 v27, v27, v24", "v_xor_b32 v28, 8, v27")
    e(f"v_lshl_add_u32 v{vDW}, v27, 4, v26", "v_lshl_add_u32 v28, v28, 4, v26", f"v_add_u32 v{vDW+1}, {4*3584 - 1024}, v28")
    e("s_lshl_b32 s44, s32, 11", "s_mov_b32 s42, 0")
    def dma(slot):
        l = []
        for mat, S in enumerate((sG, sU)):
            l.append(f"s_add_u32 m0, s44, {slot*16384 + mat*8192}")
            l += [f"buffer_load_dwordx4 v{vDW+i}, s[{S}:{S+3}], s42 offen offset:{1024*i} lds" for i in range(2)]
        l.append(f"s_add_u32 s42, s42, {32*3584}")
        return l
    for m in range(10):
        d = dma(m); e(d[0], "s_nop 0", d[1], d[2], d[3], "s_nop 0", *d[4:])
    e("v_lshrrev_b32 v26, 2, v24", "v_lshl_add_u32 v26, v25, 2, v26", "v_and_b32 v27, 3, v24", "v_lshlrev_b32 v27, 3, v27", "v_lshl_add_u32 v27, v26, 8, v27")
    e("v_and_b32 v28, 7, v26")
    for a in range(8): e(f"v_xor_b32 v29, {a}, v28", f"v_lshl_add_u32 v{vW+a}, v29, 5, v27")
    e("s_waitcnt vmcnt(40)")
    k.stamp(1)
    ln_block(e, XN, 1.0)
    e("s_waitcnt vmcnt(24)", "s_barrier")
    k.stamp(2)
    NR, LA = 16, 6
    def rdQ(f, jj):
        m, j = divmod(f, 16)
        off = ((m if m < 10 else m - 10) * 16384) & 0xffff
        a, mat = divmod(j, 2)
        return f"ds_read_b64_tr_b16 {vr(Y + 4*(f % NR) + 2*jj, 2)}, v{vW + a} offset:{off + mat*8192 + jj*4096}"
    mf = []; fill = {}
    def add(g, *t): fill.setdefault(g, []).extend(t)
    for f in range(LA): add(-1, rdQ(f, 0), rdQ(f, 1))
    NF = 14 * 16
    for f in range(NF):
        m, j = divmod(f, 16)
        for ci in range(2):
            c = ci if j % 2 == 0 else 1 - ci
            t = ar((j * 2 + c) * 4, 4)
            mf.append(f"v_mfma_f32_16x16x32_bf16 {t}, {vr(Y + 4*(f % NR), 4)}, {vr(XN + (m*2+c)*4, 4)}, {t if m else 0}")
        g0 = 2 * f; nxt = f + LA
        if f % 2 == 0:
            rem = max(0, min(NF, f + LA) - (f + 2))
            add(g0 - 1, f"s_waitcnt lgkmcnt({2 * rem})")
        if nxt < NF:
            mn, jn = divmod(nxt, 16)
            if jn == 0 and mn == 4:
                add(g0 - 1, "s_waitcnt vmcnt(0)", "s_barrier")
            if jn == 0 and mn in (4, 8):
                add(g0 - 1, *[f"v_add_u32 v{vW+a}, 0x10000, v{vW+a}" for a in range(8)])
            if jn == 0 and mn == 10:
                add(g0 - 1, *[f"v_subrev_u32 v{vW+a}, 0x20000, v{vW+a}" for a in range(8)])
                add(g0 - 1, "s_waitcnt vmcnt(0)", "s_barrier")
            add(g0, rdQ(nxt, 0)); add(g0 + 1, rdQ(nxt, 1))
        if f == 4 * 16 + 2: add(g0, "s_barrier")
        if 4 * 16 + 4 <= f < 4 * 16 + 4 + 28:
            n = f - (4 * 16 + 4)
            add(g0 + (n & 1), dma(n // 7)[n % 7])
    e(*weave(mf, fill))
    k.stamp(3)
    e("s_mul_i32 s37, s36, 57344", "s_lshl_b32 s3, s35, 12", "s_add_u32 s37, s37, s3", "s_nop 4")
    idx = 0
    for c in range(2):
        for t4 in range(4):
            t = EP + 0
            for h in range(2):
                a = 2 * t4 + h
                for r in range(4):
                    e(f"v_accvgpr_read_b32 v{t + 4*h + r}, a{((a*2 + 0) * 2 + c) * 4 + r}", f"v_accvgpr_read_b32 v{t + 8 + 4*h + r}, a{((a*2 + 1) * 2 + c) * 4 + r}")
            for i in range(8): e(f"v_mul_f32 v{t+i}, v{t+i}, v{t+8+i}")
            o = EP + 16 + 4 * (idx & 1); idx += 1
            for q in range(4): e(f"v_cvt_pk_bf16_f32 v{o + q}, v{t + 2*q}, v{t + 2*q + 1}")
            e(f"buffer_store_dwordx4 {vr(o, 4)}, v{vL16}, s[{sO}:{sO+3}], s37 offen offset:{1024 * t4}")
        if c == 0: e("s_add_u32 s37, s37, 57344")
    k.dump_stamps(5, 4, 200 * MB)
    k.label("L4_done")
    e("s_endpgm")
    return k, 384, 256, 163840, 224, 256
```

```python
import gen, k1, k2, k345, sys, importlib
OUT = 'sequential_preLN__compressed_kv_cla__glu_gated_bilinear__prompt.s'
def full(prof=None, **kw):
    o = lambda n: dict(kw.get(n, {}), prof=(prof == n))
    return [k1.gen_k1(o('k1')), k2.gen_k2(o('k2')), k345.gen_proj(3, o('k3')), k345.gen_k4(o('k4')), k345.gen_proj(5, o('k5'))]
if __name__ == '__main__':
    gen.build(full(), 'full.s')
    for n in ('k1', 'k2', 'k3', 'k4', 'k5'): gen.build(full(n), f'full_{n}.s')
    gen.build(full(), OUT)
```

```python
import re

def vr(b, n=1, p='v'):
    return f"{p}{b}" if n == 1 else f"{p}[{b}:{b+n-1}]"
def ar(b, n=1): return vr(b, n, 'a')
def sr(b, n=1): return vr(b, n, 's')

_REG = re.compile(r'^(-|abs\(|\|)?([vas])(?:(\d+)|\[(\d+):(\d+)\])\)?\|?$')
def regs_of(op):
    op = op.strip()
    if op in ('vcc', 'vcc_lo', 'vcc_hi'): return {('s', 'vcc')}
    if op == 'exec': return {('s', 'exec')}
    if op == 'm0': return {('s', 'm0')}
    m = _REG.match(op)
    if not m: return set()
    k = m.group(2)
    if m.group(3) is not None: return {(k, int(m.group(3)))}
    return {(k, i) for i in range(int(m.group(4)), int(m.group(5)) + 1)}

TRANS = ('v_exp_f32', 'v_log_f32', 'v_rcp_f32', 'v_rsq_f32', 'v_sqrt_f32', 'v_sin_f32', 'v_cos_f32')

class Ins:
    def __init__(self, text):
        self.text = text
        t = text.split(';')[0].strip()
        self.label = t.endswith(':')
        parts = t.split(None, 1)
        self.op = parts[0] if parts else ''
        rest = parts[1] if len(parts) > 1 else ''
        ops = [o.strip() for o in rest.split(',')] if rest else []
        mods = ''
        if ops:
            sp = ops[-1].split(None, 1)
            ops[-1] = sp[0]
            mods = sp[1] if len(sp) > 1 else ''
        self.ops, self.mods = ops, mods
        op = self.op
        self.w, self.r = set(), set()
        self.kind = 'other'
        self.states = 1
        self.srcc = set(); self.srcab = set(); self.passes = 0
        R = lambda i: regs_of(ops[i]) if i < len(ops) else set()
        if self.label or op.startswith('.') or op == '':
            self.kind = 'none'; self.states = 0
        elif op == 's_nop':
            self.kind = 'salu'; self.states = int(ops[0], 0) + 1
        elif op.startswith('v_mfma'):
            self.kind = 'mfma'
            self.w = R(0); self.srcab = R(1) | R(2); self.srcc = R(3); self.r = self.srcab | self.srcc
            self.passes = 8 if '32x32' in op else 4
        elif op.startswith('ds_read') or op.startswith('ds_bpermute') or op.startswith('ds_swizzle'):
            self.kind = 'ds'; self.w = R(0)
            for i in range(1, len(ops)): self.r |= R(i)
        elif op.startswith('ds_'):
            self.kind = 'ds'
            for i in range(len(ops)): self.r |= R(i)
        elif op.startswith('buffer_load') or op.startswith('global_load'):
            self.kind = 'vmem'
            if ' lds' in ' ' + mods or 'load_lds' in op:
                for i in range(len(ops)): self.r |= R(i)
                self.r |= {('s', 'm0')}; self.dma = True
            else:
                self.w = R(0)
                for i in range(1, len(ops)): self.r |= R(i)
        elif op.startswith('buffer_store') or op.startswith('global_store') or op.startswith('buffer_atomic') or op.startswith('global_atomic'):
            self.kind = 'vmem'
            for i in range(len(ops)): self.r |= R(i)
            self.store_data = R(0) if op.startswith('buffer') else R(1)
            self.wide = ('x3' in op or 'x4' in op)
        elif op.startswith('buffer_') :
            self.kind = 'vmem'
        elif op.startswith('v_'):
            self.kind = 'valu'
            self.w = R(0)
            start = 1
            if op.startswith('v_cmp'):
                pass
            if op.startswith(('v_add_co', 'v_sub_co', 'v_addc_co', 'v_subb_co', 'v_div_scale', 'v_mad_u64')):
                self.w |= R(1); start = 2
            for i in range(start, len(ops)): self.r |= R(i)
            if op.startswith(('v_fmac', 'v_dot2c', 'v_pk_fmac')): self.r |= R(0)
            if op.startswith('v_permlane') and 'swap' in op:
                self.r |= R(0); self.w |= R(1)
            if op.startswith('v_cndmask') and len(ops) == 3: self.r |= {('s', 'vcc')}
            if op.startswith('v_cmpx'): self.w |= {('s', 'exec')}
        elif op.startswith('s_'):
            self.kind = 'salu'
            if op.startswith(('s_cmp', 's_cbranch', 's_branch', 's_waitcnt', 's_barrier', 's_endpgm', 's_setprio', 's_sleep', 's_bitcmp')):
                for i in range(len(ops)): self.r |= R(i)
            else:
                self.w = R(0)
                for i in range(1, len(ops)): self.r |= R(i)
        self.trans = op.replace('_e32', '').replace('_e64', '') in TRANS
        self.dpp = 'row_' in mods or 'quad_perm' in mods or '_dpp' in op
        self.dot = op.startswith('v_dot')

def vec(s): return {x for x in s if x[0] in 'va'}
def sca(s): return {x for x in s if x[0] == 's'}

def need(p, c):
    n = 0
    if p.kind == 'valu':
        pw_v, pw_s = vec(p.w), sca(p.w)
        if c.kind == 'mfma' and pw_v & c.r: n = max(n, 2)
        if c.kind == 'vmem' and pw_s & c.r: n = max(n, 5)
        if c.kind == 'valu':
            if pw_s & c.r: n = max(n, 4 if c.op.startswith(('v_readlane', 'v_writelane', 'v_div_fmas')) else 2)
            if c.op.startswith(('v_readlane', 'v_readfirstlane')) and pw_v & c.r: n = max(n, 1)
            if c.op.startswith('v_permlane') and pw_v & c.r: n = max(n, 2)
            if c.dpp and pw_v & c.r: n = max(n, 2)
            if p.trans and not c.trans and pw_v & c.r: n = max(n, 1)
            if p.dot and (pw_v & (c.r | c.w)) and not (c.op == p.op and not (pw_v & (regs_of(c.ops[1]) | regs_of(c.ops[2]))) ): n = max(n, 3)
        if ('s', 'exec') in p.w and c.kind in ('mfma',): n = max(n, 4)
        if p.trans and c.kind in ('mfma', 'vmem', 'ds') and pw_v & c.r: n = max(n, 2)
        if p.dot and c.kind in ('mfma', 'vmem', 'ds') and pw_v & c.r: n = max(n, 3)
    if p.kind == 'salu' and ('s', 'm0') in p.w and getattr(c, 'dma', False): n = max(n, 1)
    if p.kind == 'mfma':
        k = {4: 8, 8: 12}[p.passes]
        if c.kind == 'mfma':
            if p.w & c.srcab: n = max(n, k)
            if p.w & c.srcc and not (p.w == c.srcc and p.passes == c.passes): n = max(n, k - 2)
            if p.w & c.w and not (p.w == c.srcc) : n = max(n, k - 2)
        elif c.kind in ('valu', 'vmem', 'ds'):
            if p.w & (c.r | c.w): n = max(n, k)
            if c.kind == 'valu' and p.srcc & c.w: n = max(n, {4: 3, 8: 7}[p.passes])
    if p.kind == 'vmem' and getattr(p, 'wide', False) and c.kind == 'valu' and p.store_data & c.w: n = max(n, 2)
    if p.kind == 'vmem' and getattr(p, 'wide', False) and c.kind in ('ds', 'vmem', 'mfma') and p.store_data & c.w: n = max(n, 1)
    return n

def check_hazards(lines, name=''):
    ins = [Ins(l) for l in lines]
    probs = []
    for j, c in enumerate(ins):
        if c.kind == 'none': continue
        d = 0
        for i in range(j - 1, max(-1, j - 40), -1):
            p = ins[i]
            if p.op in ('s_branch', 's_endpgm'): break
            if p.kind != 'none':
                n = need(p, c)
                if n > d:
                    probs.append(f"{name}: line {j}: [{p.text.strip()}] -> [{c.text.strip()}] needs {n} has {d}")
            d += p.states
            if d >= 20: break
    return probs

class K:
    def __init__(self, name):
        self.name = name; self.L = []
    def e(self, *txt):
        for t in txt:
            for l in t.split('\n'):
                l = l.strip()
                if l: self.L.append(l if l.endswith(':') else '    ' + l)
    def label(self, s): self.L.append(f"{s}:")
    def srd(self, d, base, nbytes, add=None):
        if add:
            self.e(f"s_add_u32 s{d}, s{base}, {hex(add)}", f"s_addc_u32 s{d+1}, s{base+1}, 0")
        else:
            self.e(f"s_mov_b32 s{d}, s{base}", f"s_mov_b32 s{d+1}, s{base+1}")
        self.e(f"s_mov_b32 s{d+2}, {hex(nbytes)}", f"s_mov_b32 s{d+3}, 0x20000")
    def code_pf(self, a, b, sreg, vaddr, vdst, nloads, setup=True):
        self._pf = getattr(self, '_pf', 0) + 1
        l = [f"s_getpc_b64 s[{sreg}:{sreg+1}]", f"s_add_u32 s{sreg}, s{sreg}, {a}@rel32@lo+4", f"s_addc_u32 s{sreg+1}, s{sreg+1}, {a}@rel32@hi+12",
             f"s_mov_b32 s{sreg+2}, {b}-{a}", f"s_mov_b32 s{sreg+3}, 0x20000"]
        if setup: l.append(f"v_lshlrev_b32 v{vaddr}, 6, v0")
        for i in range(nloads):
            if i: l.append(f"v_add_u32 v{vaddr}, 0x4000, v{vaddr}")
            l.append(f"buffer_load_dword v{vdst}, v{vaddr}, s[{sreg}:{sreg+3}], 0 offen")
        return l
    def st(self, name):
        l = getattr(self, 'stamps', [])
        if name in l: self.stamp(l.index(name))
    def stamp(self, i):
        if getattr(self, 'prof', False):
            self.e(f"s_memtime s[{80+2*(i%2)}:{81+2*(i%2)}]", f"s_memrealtime s[{84}:{85}]", "s_waitcnt lgkmcnt(0)", f"s_mov_b32 s{86+2*i}, s{80+2*(i%2)}", f"s_mov_b32 s{87+2*i}, s84")
    def dump_stamps(self, n, wsptr, off):
        if not getattr(self, 'prof', False): return
        self.e("s_waitcnt vmcnt(0)")
        self.stamp(n - 1)
        d = getattr(self, 'dbg', None)
        if d:
            kidx, slot, idxs = d
            self.e("s_load_dwordx2 s[4:5], s[0:1], 88", "s_waitcnt lgkmcnt(0)", f"s_add_u32 s4, s4, {512*(4-kidx)}", "s_addc_u32 s5, s5, 0", "s_mov_b32 s6, 256", "s_mov_b32 s7, 0x20000")
            self.e("s_lshl_b32 s3, s2, 12", "v_lshlrev_b32 v2, 12, v0", "v_add_u32 v2, s3, v2")
            for j, i in enumerate(idxs):
                self.e(f"v_mov_b32 v5, s{87+2*(i % n)}", f"buffer_store_dword v5, v2, s[4:7], 0 offen offset:{4*(slot+j)}", "s_nop 1")
            self.e("s_waitcnt vmcnt(0)")
            return
        self.e(f"s_add_u32 s4, s{wsptr}, {hex(off)}", f"s_addc_u32 s5, s{wsptr+1}, 0", "s_mov_b32 s6, 0x100000", "s_mov_b32 s7, 0x20000")
        self.e("s_lshl_b32 s3, s2, 8", "v_mov_b32 v2, s3", "v_lshrrev_b32 v3, 6, v0", "v_lshl_add_u32 v2, v3, 6, v2")
        for i in range(n):
            self.e(f"v_mov_b32 v4, s{86+2*i}", f"v_mov_b32 v5, s{87+2*i}", f"buffer_store_dwordx2 v[4:5], v2, s[4:7], 0 offen offset:{8*i}", "s_nop 1")
        self.e("s_waitcnt vmcnt(0)")
    def text(self): return f".p2align 8\n{self.name}:\n" + "\n".join(self.L) + f"\n{self.name}_end:\n"
    def desc(self, vgpr, accum, sgpr=102):
        return (f".p2align 6\n.amdhsa_kernel {self.name}\n  .amdhsa_next_free_vgpr {vgpr}\n  .amdhsa_next_free_sgpr {sgpr}\n"
                f"  .amdhsa_accum_offset {accum}\n  .amdhsa_group_segment_fixed_size 0\n  .amdhsa_kernarg_size 104\n"
                f"  .amdhsa_float_denorm_mode_32 3\n"
                f"  .amdhsa_user_sgpr_count 2\n  .amdhsa_user_sgpr_kernarg_segment_ptr 1\n  .amdhsa_system_sgpr_workgroup_id_x 1\n.end_amdhsa_kernel\n")

def weave(mf, fill):
    out = list(fill.get(-1, []))
    for i, m in enumerate(mf):
        out.append(m)
        out.extend(fill.get(i, []))
    return out
```

```python
from asmlib import *

MB = 1 << 20
WS_K, WS_V, WS_Q, WS_C = 0, 16 * MB, 32 * MB, 48 * MB
WS_PART = 64 * MB
WS_H = 96 * MB
WS_HH = 104 * MB
WS_FLAG = 120 * MB
WS_SIZE = 256 * MB
LOG2E = 1.4426950408889634

def f2u(x):
    import struct
    return struct.unpack('<I', struct.pack('<f', x))[0]

def ln_ops(XN, scale):
    l = []
    e = lambda *a: l.extend(a)
    e("v_mov_b32 v22, 0x3f803f80")
    e("v_mov_b32 v24, 0", "v_mov_b32 v25, 0", "v_mov_b32 v26, 0", "v_mov_b32 v27, 0")
    for m in range(14):
        for r in range(4):
            for c in range(2):
                x = XN + (m * 2 + c) * 4 + r
                e(f"v_dot2c_f32_bf16 v{24+c}, v{x}, v22", f"v_dot2c_f32_bf16 v{26+c}, v{x}, v{x}")
    e("s_nop 2")
    for sw in ("v_permlane32_swap_b32", "v_permlane16_swap_b32"):
        for R in (24, 25, 26, 27): e(f"v_mov_b32 v{R+4}, v{R}")
        e("s_nop 1")
        for R in (24, 25, 26, 27): e(f"{sw} v{R}, v{R+4}")
        for R in (24, 25, 26, 27): e(f"v_add_f32 v{R}, v{R}, v{R+4}")
    e(f"s_mov_b32 s3, {hex(f2u(1.0/448))}", f"s_mov_b32 s62, {hex(f2u(1e-5))}", f"s_mov_b32 s63, {hex(f2u(scale))}")
    for c in range(2):
        e(f"v_mul_f32 v{24+c}, s3, v{24+c}", f"v_mul_f32 v{26+c}, s3, v{26+c}")
        e(f"v_fma_f32 v{26+c}, -v{24+c}, v{24+c}, v{26+c}", f"v_max_f32 v{26+c}, 0, v{26+c}", f"v_add_f32 v{26+c}, s62, v{26+c}")
        e(f"v_rsq_f32 v{26+c}, v{26+c}", "s_nop 0", f"v_mul_f32 v{26+c}, s63, v{26+c}", f"v_mul_f32 v{24+c}, -v{24+c}, v{26+c}")
    e("s_mov_b32 s3, 0xffff0000")
    for m in range(14):
        for c in range(2):
            for r in range(4):
                x = XN + (m * 2 + c) * 4 + r
                t = 28 + 2 * (r & 1)
                e(f"v_lshlrev_b32 v{t}, 16, v{x}", f"v_and_b32 v{t+1}, s3, v{x}",
                  f"v_fma_f32 v{t}, v{t}, v{26+c}, v{24+c}", f"v_fma_f32 v{t+1}, v{t+1}, v{26+c}, v{24+c}",
                  f"v_cvt_pk_bf16_f32 v{x}, v{t}, v{t+1}")
    return l

def merge_streams(a, b):
    out = []; n = len(b); step = len(a) / (n + 0.0)
    j = 0
    for i, x in enumerate(a):
        while j < n and i >= j * step:
            out.extend(b[j]); j += 1
        out.append(x)
    while j < n: out.extend(b[j]); j += 1
    return out

def gen_k1(opt=None):
    opt = opt or {}
    ST = opt.get('st', '')
    k = K('k1_kernel')
    e = k.e
    k.prof = opt.get('prof', False); k.dbg = opt.get('dbgst')
    k.stamps = opt.get('stamps', ['start', 'loop', 'peel', 'epi', 'q', 'qend'])
    vLane16, vW, vC, vDC, vDW, vX = 1, 2, 10, 12, 16, 20
    Y, X, XN, EP = 32, 96, 112, 224
    sC, sW, sX, sO, sP = 16, 20, 24, 28, 68
    e("s_cmp_ge_u32 s2, 256", "s_cbranch_scc1 L1_done")
    k.st('start')
    if opt.get('cpf', 1): e(*k.code_pf('k1_kernel', 'L1_epi', 64, 30, 31, 2))
    e("s_load_dwordx8 s[4:11], s[0:1], 0", "s_load_dwordx2 s[12:13], s[0:1], 32", "s_load_dwordx2 s[14:15], s[0:1], 96")
    e("v_and_b32 v22, 63, v0", "v_lshrrev_b32 v23, 6, v0", "v_lshlrev_b32 v1, 4, v22")
    e("v_readfirstlane_b32 s32, v23")
    e("v_and_b32 v24, 15, v22", "v_lshrrev_b32 v25, 4, v22")
    e("s_and_b32 s3, s2, 7", "s_lshr_b32 s33, s2, 3")
    e("s_and_b32 s36, s33, 7")
    e("s_lshr_b32 s34, s33, 3")
    e("s_and_b32 s35, s34, 1", "s_lshl_b32 s3, s3, 1", "s_add_u32 s35, s35, s3")
    e("s_lshr_b32 s37, s34, 1")
    e("s_and_b32 s38, s33, 1", "s_add_u32 s38, s38, s3")
    e("s_lshr_b32 s39, s33, 1")
    e("s_and_b32 s33, s32, 1", "s_lshr_b32 s34, s32, 1")
    e("v_lshrrev_b32 v26, 3, v22", "s_lshl_b32 s40, s32, 6", "v_add_u32 v26, s40, v26", "v_lshlrev_b32 v26, 11, v26")
    e("v_and_b32 v27, 7, v22", "v_xor_b32 v27, v27, v25", "v_xor_b32 v28, 4, v27")
    e("v_lshl_add_u32 v27, v27, 4, v26", "v_lshl_add_u32 v28, v28, 4, v26")
    for i in range(4):
        e(f"v_add_u32 v{vDC+i}, {i*16384 - 1024*i}, v{27 + (i&1)}")
    e("v_lshrrev_b32 v26, 5, v22", "v_and_b32 v27, 31, v22")
    e("s_lshl_b32 s40, s33, 3")
    e("v_lshlrev_b32 v28, 1, v26", "v_xor_b32 v27, v27, v28", "v_xor_b32 v27, s40, v27")
    e("s_lshl_b32 s40, s32, 3", "v_add_u32 v26, s40, v26", "v_lshlrev_b32 v26, 13, v26")
    e("v_xor_b32 v28, 4, v27")
    e("v_lshl_add_u32 v27, v27, 4, v26", "v_lshl_add_u32 v28, v28, 4, v26")
    for i in range(4):
        e(f"v_add_u32 v{vDW+i}, {i*16384 - 1024*i}, v{27 + (i&1)}")
    e("s_lshl_b32 s44, s32, 12", "s_add_u32 s45, s44, 16384", "s_add_u32 s46, s44, 32768", "s_add_u32 s47, s44, 49152")
    e("s_lshl_b32 s53, s32, 13", "s_add_u32 s53, s53, 65536")
    e("s_lshl_b32 s40, s36, 19", "s_lshl_b32 s42, s35, 9", "s_cmp_eq_u32 s37, 1")
    e("s_waitcnt lgkmcnt(0)")
    e("s_cselect_b32 s48, s12, s10", "s_cselect_b32 s49, s13, s11")
    e(f"s_add_u32 s{sC}, s6, s40", f"s_addc_u32 s{sC+1}, s7, 0", f"s_mov_b32 s{sC+2}, 0x80000", f"s_mov_b32 s{sC+3}, 0x20000")
    e(f"s_add_u32 s{sW}, s48, s42", f"s_addc_u32 s{sW+1}, s49, 0", f"s_sub_u32 s{sW+2}, {1024*8192}, s42", f"s_mov_b32 s{sW+3}, 0x20000")
    e("s_mov_b32 s40, 0", "s_mov_b32 s41, 65536", "s_mov_b32 s42, 0")
    def dmaC(grp):
        return [f"s_add_u32 m0, s53, {4096*grp}" if grp else "s_mov_b32 m0, s53"] + [
            f"buffer_load_dwordx4 v{vDC+i}, s[{sC}:{sC+3}], s{40+grp} offen offset:{1024*i} lds" for i in range(4)]
    def dmaW(slot):
        return [f"s_mov_b32 m0, s{44+slot}"] + [
            f"buffer_load_dwordx4 v{vDW+i}, s[{sW}:{sW+3}], s42 offen offset:{1024*i} lds" for i in range(4)]
    def seq(l): e(l[0], "s_nop 0", *l[1:])
    def pro(n):
        seq(dmaC(n & 1))
        if n & 1:
            e("s_add_u32 s40, s40, 128", "s_add_u32 s41, s41, 128", "s_add_u32 s53, s53, 32768")
        seq(dmaW(n))
        e(f"s_add_u32 s42, s42, {32*8192}")
    pro(0); pro(1)
    k.srd(sX, 4, 2048 * 896)
    e("s_lshl_b32 s3, s38, 9", "s_add_u32 s56, s8, s3", "s_addc_u32 s57, s9, 0", f"s_sub_u32 s58, {448*8192}, s3")
    k.srd(sO, 14, WS_C if not opt.get('oob') else 0)
    e("s_lshl_b32 s3, s39, 7", "s_lshl_b32 s43, s32, 5", "s_add_u32 s3, s3, s43")
    e("v_lshrrev_b32 v26, 2, v22", "v_add_u32 v26, s3, v26", "v_mul_u32_u24 v26, 896, v26", "v_and_b32 v27, 3, v22", "v_lshl_add_u32 v20, v27, 4, v26", "v_add_u32 v21, 14336, v20")
    e("v_lshrrev_b32 v26, 2, v24", "v_lshl_add_u32 v27, v25, 3, v26", "v_lshlrev_b32 v27, 9, v27")
    e("v_and_b32 v28, 3, v24", "v_lshl_add_u32 v27, v28, 3, v27")
    e("s_lshl_b32 s3, s34, 8", "v_add_u32 v27, s3, v27")
    e("v_and_b32 v28, 1, v25", "v_lshl_add_u32 v28, v28, 2, v26")
    for a in range(8):
        e(f"v_xor_b32 v29, {a}, v28", f"v_lshl_add_u32 v{vW+a}, v29, 5, v27")
    e("s_lshl_b32 s3, s33, 7", "v_add_u32 v26, s3, v24", "v_lshlrev_b32 v26, 7, v26", "v_add_u32 v26, 65536, v26")
    e("v_lshrrev_b32 v27, 1, v24", "v_xor_b32 v27, v27, v25", "v_xor_b32 v28, 4, v27")
    e(f"v_lshl_add_u32 v{vC}, v27, 4, v26", f"v_lshl_add_u32 v{vC+1}, v28, 4, v26")
    e("s_load_dwordx2 s[72:73], s[0:1], 40", "s_load_dwordx4 s[76:79], s[0:1], 56", "s_load_dwordx2 s[74:75], s[0:1], 72")
    for i in range(256): e(f"v_accvgpr_write_b32 a{i}, 0")
    PS = opt.get('ps', 5)
    CH = opt.get('ch', 57344)
    e("s_waitcnt lgkmcnt(0)")
    e(f"s_mov_b32 s{sP}, s4", f"s_mov_b32 s{sP+1}, s5", f"s_mov_b32 s{sP+2}, {2048*896}", f"s_mov_b32 s{sP+3}, 0x20000", "s_mov_b32 s59, 0")
    first = -(-2048*896 // CH)
    for ptr, size in ((8, 448*8192), (72, 4096*896), (76, 448*3584), (78, 448*3584), (74, 1792*896)):
        e(f"s_cmp_ge_u32 s2, {first}", f"s_cselect_b32 s{sP}, s{ptr}, s{sP}", f"s_cselect_b32 s{sP+1}, s{ptr+1}, s{sP+1}",
          f"s_cselect_b32 s{sP+2}, {size}, s{sP+2}", f"s_cselect_b32 s59, {first}, s59")
        first += -(-size // CH)
    assert first <= 256
    e("s_sub_u32 s59, s2, s59", f"s_mul_i32 s59, s59, {CH}", f"v_lshlrev_b32 v23, {PS}, v0")
    e(f"s_add_u32 s{sP}, s{sP}, s59", f"s_addc_u32 s{sP+1}, s{sP+1}, 0", f"s_sub_u32 s{sP+2}, s{sP+2}, s59", f"s_cselect_b32 s{sP+2}, 0, s{sP+2}",
      f"s_min_u32 s{sP+2}, s{sP+2}, {CH}", "s_mov_b32 s59, 0")
    pro(2); pro(3)
    pfi = [f"buffer_load_dword v{EP}, v23, s[{sP}:{sP+3}], s59 offen", f"s_add_u32 s59, s59, {256 << PS}"]
    e(*pfi)
    e("s_mov_b32 s55, s53", "s_sub_u32 s54, s53, 65536", "s_mov_b32 s60, 32768", "s_mov_b32 s61, -65536")
    def rdW(a, jj, slot, p):
        d = Y + 32 * p + 4 * a + 2 * jj
        return f"ds_read_b64_tr_b16 {vr(d,2)}, v{vW+a} offset:{slot*16384 + jj*2048}"
    def rdC(b, sp):
        return f"ds_read_b128 {vr(X + 4*(b&3),4)}, v{vC+sp} offset:{b*2048}"
    e("s_waitcnt vmcnt(21)", "s_barrier")
    k.st('loop')
    for a in range(8):
        e(rdW(a, 0, 0, 0), rdW(a, 1, 0, 0))
    e(rdC(0, 0), rdC(1, 0))
    e("s_mov_b32 s50, 7")
    e("s_cmp_eq_u32 s37, 1", "s_cbranch_scc1 L1_loopV")
    wcnt = [3, 3, 3, 3, 2, 2, 0, 0]
    ncp = 3 if opt.get('cpf', 1) else 0
    xl = [f"buffer_load_dwordx4 {vr(XN + (m*2+c)*4, 4)}, v{vX+c}, s[{sX}:{sX+3}], 0 offen offset:{64*m}" for m in range(14) for c in range(2)]
    def kstep(n, isV, last=False):
        p = n & 1
        mf = []; fill = {}
        def add(g, *t): fill.setdefault(g, []).extend(t)
        wq = [(a, jj) for a in range(8) for jj in range(2)]
        dC, dW = dmaC(n & 1), dmaW(n & 3)
        fin = last and n == 3
        for b in range(8):
            for ai in range(8):
                a = ai if b % 2 == 0 else 7 - ai
                wreg, creg = vr(Y + 32 * p + 4 * a, 4), vr(X + 4 * (b & 3), 4)
                if isV:
                    t = ar((b * 8 + a) * 4, 4); mf.append(f"v_mfma_f32_16x16x32_bf16 {t}, {creg}, {wreg}, {t}")
                else:
                    t = ar(((2 * (b >> 1) + (a & 1)) * 8 + (b & 1) * 4 + (a >> 1)) * 4, 4); mf.append(f"v_mfma_f32_16x16x32_bf16 {t}, {wreg}, {creg}, {t}")
            g0 = b * 8
            if fin: add(g0 - 1, f"s_waitcnt lgkmcnt({1 if b < 7 else 0})")
            else: add(g0 - 1, f"s_waitcnt lgkmcnt({wcnt[b-2] + 1 + wcnt[b-1]})")
            pos = g0
            if b == 0:
                vm = [17, 13, 17, 12][n] if not last else [17 + ncp, 16 + ncp, 23 + ncp, 63][n]
                add(pos, f"s_waitcnt vmcnt({vm})", "s_barrier"); pos += 1
            if b < 6: add(pos, rdC(b + 2, n & 1))
            elif not fin: add(pos, rdC(b - 6, (n + 1) & 1))
            pos += 1
            for _ in range(wcnt[b]):
                a, jj = wq.pop(0)
                if not fin: add(pos, rdW(a, jj, (n + 1) & 3, p ^ 1))
                pos += 1
            i = b & 3
            if not last:
                d = dC if b < 4 else dW
                if i == 0: add(pos - 1, d[0])
                add(pos + (0 if b == 0 else 1), d[1 + i])
            else:
                if b < 7: add(pos + (0 if b == 0 else 1), xl[7 * n + b])
                if b == 4: add(g0 + 6, dW[0])
                if b >= 4: add(g0 + 7, dW[1 + i])
            if b == 5 and n & 1 == 0:
                add(g0 + 7, "s_cmp_eq_u32 s54, s55", "s_cselect_b32 s52, s61, s60")
            if b == 6:
                add(g0 + 4, f"v_add_u32 v{vC + (n & 1)}, s52, v{vC + (n & 1)}")
                if n & 1 and not last:
                    add(g0 + 5, "s_mov_b32 s53, s54", "s_add_u32 s54, s54, s52")
                    add(g0 + 6, "s_add_u32 s40, s40, 128", "s_add_u32 s41, s41, 128")
                if n & 1 and last and not fin: add(g0 + 5, "s_add_u32 s54, s54, s52")
            if b == 7:
                add(g0 + (5 if not last else 7), f"s_add_u32 s42, s42, {32*8192}")
        return mf, fill
    pf = []
    for isV in (0, 1):
        lab = "L1_loopV" if isV else "L1_loopK"
        k.label(lab)
        for n in range(4):
            mf, fill = kstep(n, isV)
            if n == 3:
                fill.setdefault(60, []).append(pfi[0]); fill.setdefault(61, []).append(pfi[1])
                fill.setdefault(62, []).extend(["s_sub_u32 s50, s50, 1", "s_cmp_lg_u32 s50, 0"])
                fill.setdefault(63, []).extend([f"s_cbranch_scc1 {lab}"])
            e(*weave(mf, fill))
        k.st('peel')
        if opt.get('cpf', 1): e(*k.code_pf('L1_epi', opt.get('cend', 'k2_kernel_end'), 64, 30, 31, 3))
        e(f"s_mov_b32 s{sW}, s56", f"s_mov_b32 s{sW+1}, s57", f"s_mov_b32 s{sW+2}, s58", "s_mov_b32 s42, 0")
        for n in range(4):
            mf, fill = kstep(n, isV, last=True)
            e(*weave(mf, fill))
        if not isV: e("s_branch L1_epi")
    k.label("L1_epi")
    e("s_barrier")
    k.st('epi')
    e("s_lshl_b32 s3, s34, 8")
    for a in range(8): e(f"v_subrev_u32 v{vW+a}, s3, v{vW+a}")
    e("s_lshl_b32 s64, s35, 20", "s_lshl_b32 s3, s36, 17", "s_add_u32 s64, s64, s3", "s_lshl_b32 s3, s33, 16", "s_add_u32 s64, s64, s3")
    e("s_lshl_b32 s3, s37, 24", "s_add_u32 s64, s64, s3")
    e("s_lshl_b32 s3, s34, 13", "s_add_u32 s64, s64, s3")
    if opt.get('lin'): e("s_lshl_b32 s64, s2, 17", "s_lshl_b32 s3, s33, 16", "s_add_u32 s64, s64, s3", "s_lshl_b32 s3, s34, 13", "s_add_u32 s64, s64, s3")
    def grp(idx):
        p, j = divmod(idx, 8)
        t = EP + 16 * (idx & 1)
        l = [f"v_accvgpr_read_b32 v{t + 4*h + r}, a{((2*p + h) * 8 + j) * 4 + r}" for h in range(2) for r in range(4)]
        l += [f"v_cvt_pk_bf16_f32 v{t + 8 + q}, v{t + 2*q}, v{t + 2*q + 1}" for q in range(4)]
        if not opt.get('nost'): l += [f"buffer_store_dwordx4 {vr(t + 8, 4)}, v{vLane16}, s[{sO}:{sO+3}], s64 offen offset:{1024*(j&3)}{ST}"]
        if j == 3: l += ["s_add_u32 s64, s64, 4096"]
        if j == 7: l += ["s_add_u32 s64, s64, 12288"]
        return l
    e("s_mul_i32 s3, s32, 24576", "s_add_u32 s3, s3, 65536")
    e("v_and_b32 v23, 3, v0", "v_mul_u32_u24 v23, 288, v23", "v_bfe_u32 v24, v0, 2, 4", "v_lshl_add_u32 v23, v24, 4, v23", "v_add_u32 v23, s3, v23")
    e("v_bfe_u32 v24, v0, 4, 2", "v_mul_u32_u24 v24, 288, v24", "v_and_b32 v25, 15, v0", "v_lshl_add_u32 v24, v25, 4, v24", "v_add_u32 v24, s3, v24")
    e(*grp(0), *grp(1))
    e("s_waitcnt vmcnt(4)")
    k.st('x')
    tp = []
    for h in range(2):
        tp += [f"ds_write_b128 v23, {vr(XN + 4*(14*h+i), 4)} offset:{1152*i}" for i in range(14)] + ["s_waitcnt lgkmcnt(0)"]
        tp += [f"ds_read_b128 {vr(XN + 4*(14*h+i), 4)}, v24 offset:{1152*i}" for i in range(14)] + ["s_waitcnt lgkmcnt(0)"]
    e(*merge_streams(tp, [[], grp(2), grp(3), grp(4), grp(5)]))
    e("s_barrier")
    k.st('bp')
    gl = []
    for m in range(4, 10):
        d = dmaW(0)
        gl.append([f"s_add_u32 m0, s44, {m*16384}", "s_nop 0", d[1], d[2]])
        gl.append([d[3], d[4], f"s_add_u32 s42, s42, {32*8192}"])
    gl += [grp(i) for i in range(6, 16)]
    e(*merge_streams(ln_ops(XN, LOG2E / 16), gl))
    k.st('ln')
    e("s_waitcnt vmcnt(40)", "s_barrier")
    k.st('q')
    NR, LA = 16, 6
    def rdQ(f, jj):
        m, j = divmod(f, 16)
        off = ((m if m < 10 else m - 10) * 16384) & 0xffff
        d = Y + 4 * (f % NR) + 2 * jj
        return f"ds_read_b64_tr_b16 {vr(d,2)}, v{vW + (j & 7)} offset:{off + (j >> 3) * 256 + jj * 2048}"
    mf = []; fill = {}
    def add(g, *t): fill.setdefault(g, []).extend(t)
    for f in range(LA): add(-1, rdQ(f, 0), rdQ(f, 1))
    NF = 14 * 16
    ep2 = [x for i in range(16, 32) for x in grp(i)]
    ep_gap = {}
    G0, G1 = 4, 2 * NF - 8
    for i, x in enumerate(ep2): ep_gap.setdefault(G0 + (i * (G1 - G0)) // len(ep2), []).append(x)
    lastdma = 2 * (4 * 16 + 4 + 30) + 1
    waitg = 2 * (160 - LA) - 1
    young = sum(1 for g, l in ep_gap.items() for x in l if 'buffer_store' in x and lastdma <= g < waitg)
    for f in range(NF):
        m, j = divmod(f, 16)
        for ci in range(2):
            c = ci if j % 2 == 0 else 1 - ci
            t = ar((j * 2 + c) * 4, 4)
            mf.append(f"v_mfma_f32_16x16x32_bf16 {t}, {vr(Y + 4*(f % NR), 4)}, {vr(XN + (m*2+c)*4, 4)}, {t if m else 0}")
        g0 = 2 * f
        nxt = f + LA
        if f % 2 == 0:
            rem = max(0, min(NF, f + LA) - (f + 2))
            add(g0 - 1, f"s_waitcnt lgkmcnt({2 * rem})")
        if nxt < NF:
            mn, jn = divmod(nxt, 16)
            if jn == 0 and mn == 4:
                y4 = 10 + sum(1 for g, l in ep_gap.items() for x in l if 'buffer_store' in x and g < g0 - 1)
                add(g0 - 1, f"s_waitcnt vmcnt({y4})", "s_barrier")
            if jn == 0 and mn in (4, 8):
                add(g0 - 1, *[f"v_add_u32 v{vW+a}, 0x10000, v{vW+a}" for a in range(8)])
            if jn == 0 and mn == 10:
                add(g0 - 1, *[f"v_subrev_u32 v{vW+a}, 0x20000, v{vW+a}" for a in range(8)])
                add(g0 - 1, f"s_waitcnt vmcnt({young if not opt.get('nowait') else 63})", "s_barrier")
            add(g0, rdQ(nxt, 0)); add(g0 + 1, rdQ(nxt, 1))
        if f == 4 * 16 + 2: add(g0, "s_barrier")
        if 4 * 16 + 4 <= f < 4 * 16 + 4 + 32 and (f % 2 == 0):
            n = (f - (4 * 16 + 4)) // 2
            if n % 4 == 0: add(g0, f"s_mov_b32 m0, s{44 + n // 4}")
            add(g0 + 1, dmaW(0)[1 + n % 4])
            if n % 4 == 3: add(g0 + 2, f"s_add_u32 s42, s42, {32*8192}")
    for g, l in ep_gap.items(): add(g, *l)
    e(*weave(mf, fill))
    k.st('qend')
    e("s_lshl_b32 s64, s38, 20", "s_lshl_b32 s3, s39, 16", "s_add_u32 s64, s64, s3", "s_lshl_b32 s3, s32, 14", "s_add_u32 s64, s64, s3")
    e(f"s_add_u32 s64, s64, {hex(WS_Q)}", "s_nop 4")
    idx = 0
    for c in range(2):
        for t8 in range(8):
            t = EP + 16 * (idx & 1); idx += 1
            for h in range(2):
                for r in range(4):
                    e(f"v_accvgpr_read_b32 v{t + 4*h + r}, a{((2*t8 + h) * 2 + c) * 4 + r}")
            for q in range(4):
                e(f"v_cvt_pk_bf16_f32 v{t + 8 + q}, v{t + 2*q}, v{t + 2*q + 1}")
            if t8 % 4 == 0 and idx > 1: e("s_add_u32 s64, s64, 4096")
            e(f"buffer_store_dwordx4 {vr(t + 8, 4)}, v{vLane16}, s[{sO}:{sO+3}], s64 offen offset:{1024 * (t8 % 4)}{ST}")
    k.srd(4, 14, 128 * 128, add=WS_FLAG)
    e("s_lshl_b32 s3, s2, 7", "v_mov_b32 v2, s3", "v_mov_b32 v3, 0", "s_mov_b64 exec, 1")
    e("buffer_store_dword v3, v2, s[4:7], 0 offen", "s_mov_b64 exec, -1")
    k.dump_stamps(len(k.stamps) + 1, 14, 200 * MB + opt.get('pidx', 0) * MB)
    k.label("L1_done")
    e("s_endpgm")
    e(*pf)
    return k, 512, 256, 163840, 256, 256
```

```python
from asmlib import *
from k1 import MB, WS_K, WS_V, WS_Q, WS_C, WS_PART, WS_FLAG, WS_SIZE, f2u
WS_STAT = WS_PART + 16 * MB

def gen_k2(opt=None):
    opt = opt or {}
    k = K('k2_kernel'); e = k.e
    k.prof = opt.get('prof', False); k.dbg = opt.get('dbgst')
    THR = opt.get('thr', 65536.0)
    STF = opt.get('st', '')
    vL16, vB, vD, vLB = 1, 2, 3, 4
    vQ, vNM, vLs, vLU = 5, 7, 9, 11
    T = 13
    CI, S, E, P, EP, O = 16, 32, 64, 80, 96, 128
    aQ, aR, aP = 0, 64, 128
    sK, sV, sQ, sO = 8, 12, 16, 20
    NEG = -1e30
    ci = lambda kt, c: CI + (kt * 2 + c) * 4
    sreg = lambda par, kt, c: S + 16 * par + (kt * 2 + c) * 4
    ereg = lambda kt, c: E + (kt * 2 + c) * 4
    preg = lambda par, c: P + 8 * par + 4 * c
    oreg = lambda i, c: O + (i * 2 + c) * 4

    e("s_cmp_ge_u32 s2, 256", "s_cbranch_scc1 L2_done")
    k.stamp(0)
    if opt.get('cpf', 1): e(*k.code_pf('k2_kernel', 'L2_done', 64, 126, 127, 2))
    e("s_load_dwordx2 s[4:5], s[0:1], 96")
    e("v_and_b32 v13, 63, v0", "v_lshrrev_b32 v14, 6, v0", f"v_lshlrev_b32 v{vL16}, 4, v13")
    e("v_readfirstlane_b32 s24, v14")
    e("s_and_b32 s3, s2, 7", "s_lshr_b32 s26, s2, 3", "s_and_b32 s25, s26, 1", "s_lshl_b32 s3, s3, 1", "s_add_u32 s25, s25, s3")
    e("s_lshr_b32 s26, s26, 1", "s_and_b32 s27, s26, 1", "s_lshr_b32 s26, s26, 1")
    e("s_sub_u32 s28, 15, s26")
    e("s_lshl_b32 s3, s26, 2", "s_sub_u32 s43, 30, s3")
    e("s_add_u32 s44, s3, 4")
    e("s_cmp_eq_u32 s27, 1")
    e("s_cselect_b32 s29, s43, 34", "s_cselect_b32 s30, 0, s43")
    e("s_sub_u32 s3, s43, 2", "s_cmp_eq_u32 s27, 1", "s_cselect_b32 s38, s3, -1")
    e("s_cselect_b32 s39, -1, 30")
    e("s_mov_b32 s31, 0")
    e("s_lshl_b32 s37, s24, 12")
    e(f"v_add_u32 v{vD}, s37, v{vL16}", f"v_subrev_u32 v{vLB}, s37, v{vL16}")
    e("s_waitcnt lgkmcnt(0)")
    e("s_lshl_b32 s3, s25, 20", "s_lshl_b32 s45, s30, 14", "s_add_u32 s45, s45, s3")
    e(f"s_add_u32 s{sK}, s4, s45", f"s_addc_u32 s{sK+1}, s5, 0", f"s_lshl_b32 s{sK+2}, s29, 14", f"s_mov_b32 s{sK+3}, 0x20000")
    e(f"s_add_u32 s{sV}, s{sK}, {hex(WS_V - 32768)}", f"s_addc_u32 s{sV+1}, s{sK+1}, 0", f"s_add_u32 s{sV+2}, s{sK+2}, 32768", f"s_mov_b32 s{sV+3}, 0x20000")
    e(f"s_add_u32 s3, s3, {hex(WS_Q)}", f"s_add_u32 s{sQ}, s4, s3", f"s_addc_u32 s{sQ+1}, s5, 0", f"s_mov_b32 s{sQ+2}, 0x100000", f"s_mov_b32 s{sQ+3}, 0x20000")
    k.srd(sO, 4, WS_SIZE)
    def qloads(sq):
        l = [f"s_lshl_b32 s46, s{sq}, 16", "s_lshl_b32 s47, s24, 14", "s_add_u32 s46, s46, s47"]
        for i in range(16):
            if i and i % 4 == 0: l.append("s_add_u32 s46, s46, 4096")
            l.append(f"buffer_load_dwordx4 {ar(aQ + 4*i, 4)}, v{vL16}, s[{sQ}:{sQ+3}], s46 offen offset:{1024*(i%4)}")
        return l
    e(*qloads(28))
    def dmaK(): return ["s_mov_b32 m0, s35"] + [f"buffer_load_dwordx4 v{vD}, s[{sK}:{sK+3}], s32 offen offset:{1024*i} lds" for i in range(4)] + ["s_add_u32 s32, s32, 16384"]
    def dmaV(): return ["s_add_u32 m0, s35, 16384"] + [f"buffer_load_dwordx4 v{vD}, s[{sV}:{sV+3}], s33 offen offset:{1024*i} lds" for i in range(4)] + ["s_add_u32 s33, s33, 16384"]
    e("s_mov_b32 s32, 0", "s_mov_b32 s33, 32768", "s_mov_b32 s35, s37")
    for st in range(4):
        for d in ((dmaK(), dmaV()) if st >= 2 else (dmaK(),)): e(d[0], "s_nop 0", *d[1:])
        e("s_add_u32 s35, s35, 32768")
    e("s_mov_b32 s34, s37", f"s_add_u32 s36, s37, {5*32768}")
    e(f"v_mov_b32 v{vB}, v{vL16}")
    e(f"s_mov_b32 s48, {hex(f2u(THR))}")
    e("s_waitcnt vmcnt(20)", "s_barrier")
    k.stamp(1)

    uid = [0]
    def rd(f, part):
        return f"ds_read_b128 {ar(aR + 4*f, 4)}, v{vB} offset:{part*16384 + f*1024}"
    def kfrag(f):
        t, kt = divmod(f, 2); return (t >> 2) * 8 + kt * 4 + (t & 3)
    def rdK(f): return f"ds_read_b128 {ar(aR + 4*f, 4)}, v{vB} offset:{kfrag(f)*1024}"
    def rdV(f): return rd(f, 1)

    def maskblock(lab):
        l = [f"{lab}:", "s_mov_b32 s39, 0", f"v_mov_b32 v{T+2}, {hex(f2u(NEG))}"]
        for c in range(2):
            l.append(f"v_subrev_u32 v{T}, s40, v{vQ+c}")
            for i in range(8):
                l.append(f"v_cmp_le_i32 s[{52+2*i}:{53+2*i}], {16*(i//4) + i%4}, v{T}")
            for i in range(8):
                l.append(f"v_cndmask_b32 v{ci(i//4, c) + i%4}, v{T+2}, v{vNM+c}, s[{52+2*i}:{53+2*i}]")
        l += ["s_add_u32 s40, s40, 32", "s_nop 0", f"s_branch {lab}_ret"]
        return l
    def switchblock(lab):
        return [f"{lab}:", "s_mov_b32 s32, 0", "s_mov_b32 s33, 0", f"s_lshl_b32 s{sK+2}, s44, 14", f"s_add_u32 s{sV+2}, s{sK+2}, 32768", f"s_branch {lab}_ret"]
    def rowmax(par):
        l = []
        for c in range(2):
            a, b = sreg(par, 0, c), sreg(par, 1, c)
            l += [f"v_max3_f32 v{T+c}, v{a}, v{a+1}, v{a+2}", f"v_max3_f32 v{T+c}, v{T+c}, v{a+3}, v{b}",
                  f"v_max3_f32 v{T+c}, v{T+c}, v{b+1}, v{b+2}", f"v_max_f32 v{T+c}, v{T+c}, v{b+3}"]
        for sw in ("v_permlane32_swap_b32", "v_permlane16_swap_b32"):
            l += [f"v_mov_b32 v{EP}, v{T}", f"v_mov_b32 v{EP+1}, v{T+1}", "s_nop 1", f"{sw} v{T}, v{EP}", f"{sw} v{T+1}, v{EP+1}",
                  f"v_max_f32 v{T}, v{T}, v{EP}", f"v_max_f32 v{T+1}, v{T+1}, v{EP+1}"]
        return l
    def shift(regs_by_c):
        return [f"v_sub_f32 v{r}, v{r}, v{T+c}" for c in range(2) for r in regs_by_c(c)]
    def quads(fn, c): return [fn(kt, c) + r for kt in range(2) for r in range(4)]
    def smops(par):
        ops = []
        for c in range(2):
            src = quads(lambda kt, c: sreg(par, kt, c), c); dst = quads(ereg, c)
            seq = []
            for i in range(8):
                seq.append(('x', f"v_exp_f32 v{dst[i]}, v{src[i]}"))
                if i == 2: seq.append(('v', f"v_add_f32 v{vLU+c}, v{dst[0]}, v{dst[1]}"))
                if i >= 3: seq.append(('v', f"v_add_f32 v{vLU+c}, v{vLU+c}, v{dst[i-1]}"))
                if i in (2, 4, 6): seq.append(('v', f"v_cvt_pk_bf16_f32 v{preg(par,c) + i//2 - 1}, v{dst[i-2]}, v{dst[i-1]}"))
            tail = [('v', f"v_add_f32 v{vLU+c}, v{vLU+c}, v{dst[7]}"), ('v', f"v_cvt_pk_bf16_f32 v{preg(par,c) + 3}, v{dst[6]}, v{dst[7]}")]
            if c == 0: ops += seq; pend = tail
            else: ops += seq[:1] + pend + seq[1:] + [('v', "s_nop 0")] + tail
        return ops
    rare_blocks = []
    def rare(par, lab, hasQK):
        l = [f"{lab}:", "s_nop 7", "s_nop 3"]
        l += rowmax(par)
        l += [f"v_max_f32 v{T}, 0, v{T}", f"v_max_f32 v{T+1}, 0, v{T+1}"]
        l += shift(lambda c: quads(lambda kt, c: sreg(par, kt, c), c))
        if hasQK: l += shift(lambda c: quads(lambda kt, c: sreg(par ^ 1, kt, c), c))
        l += shift(lambda c: quads(ci, c)) + shift(lambda c: [vNM + c])
        l += [f"v_exp_f32 v{T}, -v{T}", f"v_exp_f32 v{T+1}, -v{T+1}", "s_nop 0"]
        for c in range(2):
            l.append(f"v_mul_f32 v{vLs+c}, v{vLs+c}, v{T+c}")
            for i in range(16):
                for r in range(4): l.append(f"v_mul_f32 v{oreg(i,c)+r}, v{oreg(i,c)+r}, v{T+c}")
        l += [t for _, t in smops(par)]
        l += ["s_nop 1", f"s_branch {lab}_ret"]
        return l

    def step(name, hasPV, hasQK, hasSM, nxt, par, extra=None, vm=24, firstPV=False):
        uid[0] += 1; u = uid[0]
        mf = []; reads = []
        if hasPV:
            for i in range(16):
                for cc in range(2):
                    c = cc if i % 2 == 0 else 1 - cc
                    o = vr(oreg(i, c), 4)
                    mf.append(f"v_mfma_f32_16x16x32_bf16 {o}, {ar(aR + 4*i, 4)}, {vr(preg(par^1, c), 4)}, {o}")
            reads += [rdV(f) for f in range(16)]
        q0 = len(mf)
        if hasQK:
            for f in range(16):
                t, kt = divmod(f, 2)
                for cc in range(2):
                    c = cc if kt == 0 else 1 - cc
                    d = vr(sreg(par ^ 1, kt, c), 4)
                    src = vr(ci(kt, c), 4) if t == 0 else d
                    mf.append(f"v_mfma_f32_16x16x32_bf16 {d}, {ar(aR + 4*f, 4)}, {ar(aQ + (c*8+t)*4, 4)}, {src}")
            reads += [rdK(f) for f in range(16)]
        nM = len(mf); nF = nM // 2
        fill = {}; cost = {}
        def add(g, t, w=1):
            fill.setdefault(g, []).append(t); cost[g] = cost.get(g, 0) + w
        Bg = nM - 17
        own = list(range(8, nF)); span = Bg - 6
        rgap = {}
        for i, f in enumerate(own):
            g = (i * span) // max(1, len(own) - 1) if len(own) > 8 else i
            g = max(g, 2 * f - 31)
            rgap[f] = g
        for f in range(0, nF, 4):
            last = f + 3
            if 2 * f - 1 >= Bg:
                continue
            if last < 8: young = (7 - last) + sum(1 for x in own if rgap[x] <= 2 * f - 2)
            else: young = sum(1 for x in own if x > last and rgap[x] <= 2 * f - 2)
            add(2 * f - 1, f"s_waitcnt lgkmcnt({min(15, young)})")
        for f in own: add(rgap[f], reads[f])
        add(0, "s_sub_u32 s38, s38, 1"); add(0, f"s_cbranch_scc1 L2_sw{u}"); add(0, f"L2_sw{u}_ret:", 0)
        rare_blocks.extend(switchblock(f"L2_sw{u}"))
        dm = dmaK() + dmaV()
        if nM == 64: pos = [2, 3, 8, 13, 18, 19, 22, 23, 28, 34, 39, 40]
        else: pos = [1, 2, 3, 4, 5, 6, 7, 8, 9, 10, 11, 12]
        for g, t in zip(pos, dm): add(g, t)
        if hasQK:
            g = q0 - 1
            add(g, "s_sub_u32 s39, s39, 1"); add(g, f"s_cbranch_scc1 L2_mk{u}"); add(g, f"L2_mk{u}_ret:", 0)
            rare_blocks.extend(maskblock(f"L2_mk{u}"))
        add(Bg - 2, "s_mov_b32 s35, s34"); add(Bg - 2, "s_add_u32 s34, s34, 32768")
        add(Bg - 1, "s_cmp_eq_u32 s34, s36"); add(Bg - 1, "s_cselect_b32 s34, s37, s34")
        add(Bg, f"s_waitcnt vmcnt({vm}) lgkmcnt(0)"); add(Bg, "s_barrier"); add(Bg, f"v_add_u32 v{vB}, s34, v{vLB}")
        if nxt:
            for f in range(8): add(Bg + 1 + 2 * f, rdK(f) if nxt == 'K' else rdV(f))
        for g, t in (extra or []): add(g, t)
        if hasSM:
            ops = smops(par) + [('v', f"v_add_f32 v{T}, v{vLU}, v{vLU+1}"), ('v', f"v_cmp_lt_f32 vcc, s48, v{T}")]
            g = 3 if not hasPV else 3
            end = nM - 2
            total = sum(2 if kd == 'x' else 1 for kd, _ in ops)
            cap = 2
            free = sum(max(0, cap - cost.get(x, 0)) for x in range(g, end))
            while free < total:
                cap += 1
                free = sum(max(0, cap - cost.get(x, 0)) for x in range(g, end))
            budget = 0.0; rate = total / free
            i = 0
            for x in range(g, end):
                budget += max(0, cap - cost.get(x, 0)) * rate
                while i < len(ops) and budget >= (2 if ops[i][0] == 'x' else 1) - 0.5:
                    w = 2 if ops[i][0] == 'x' else 1
                    add(x, ops[i][1], w); budget -= w; i += 1
            while i < len(ops): add(end, ops[i][1]); i += 1
            add(nM - 1, f"s_cbranch_vccnz L2_rare{u}"); add(nM - 1, f"L2_rare{u}_ret:", 0)
            add(nM - 1, f"v_add_f32 v{vLs}, v{vLs}, v{vLU}"); add(nM - 1, f"v_add_f32 v{vLs+1}, v{vLs+1}, v{vLU+1}")
            rare_blocks.extend(rare(par, f"L2_rare{u}", hasQK))
        return weave(mf, fill)

    k.label("L2_seg")
    e("v_and_b32 v13, 15, v0", "v_bfe_u32 v14, v0, 4, 2", "v_lshlrev_b32 v14, 2, v14", "v_sub_u32 v13, v13, v14")
    e("s_lshl_b32 s40, s28, 7", "s_lshl_b32 s3, s24, 5", "s_add_u32 s3, s3, s40")
    e(f"v_add_u32 v{vQ}, s3, v13", f"v_add_u32 v{vQ+1}, 16, v{vQ}")
    for f in range(8): e(rdK(f))
    for r in list(range(vNM, vNM + 4)) + list(range(CI, CI + 16)) + list(range(O, O + 128)): e(f"v_mov_b32 v{r}, 0")
    e(*step("PRO", 0, 1, 0, 'K', 1))
    e("s_nop 7")
    e(*rowmax(0))
    e(*shift(lambda c: quads(lambda kt, c: sreg(0, kt, c), c)), *shift(lambda c: quads(ci, c)), *shift(lambda c: [vNM + c]))
    e("s_sub_u32 s42, s29, 2", "s_lshr_b32 s42, s42, 1")
    e(*step("F", 0, 1, 1, 'V', 0, vm=16))
    e("s_cmp_eq_u32 s31, 1", "s_cbranch_scc0 L2_noflag", "s_cmp_eq_u32 s24, 0", "s_cbranch_scc0 L2_noflag")
    e("s_lshl_b32 s3, s25, 3", "s_add_u32 s3, s3, s26", "s_lshl_b32 s3, s3, 7", f"s_add_u32 s3, s3, {hex(WS_FLAG)}")
    e(f"v_mov_b32 v{T}, 0", f"v_mov_b32 v{T+1}, 1", "s_mov_b64 exec, 1", f"buffer_store_dword v{T+1}, v{T}, s[{sO}:{sO+3}], s3 offen sc1", "s_mov_b64 exec, -1")
    k.label("L2_noflag")
    e("s_sub_u32 s42, s42, 1", "s_cbranch_scc1 L2_tail")
    k.label("L2_loop")
    e(*step("M1", 1, 1, 1, 'V', 1))
    e(*step("M0", 1, 1, 1, 'V', 0))
    e("s_sub_u32 s42, s42, 1", "s_cbranch_scc0 L2_loop")
    k.label("L2_tail")
    e("s_cmp_eq_u32 s27, 1", "s_cbranch_scc0 L2_noq", "s_cmp_eq_u32 s31, 0", "s_cbranch_scc0 L2_noq")
    e(*qloads(26))
    k.label("L2_noq")
    if opt.get('cpf', 1): e(*k.code_pf('k3_kernel', 'k5_kernel_end', 64, 126, 127, 3))
    e(*step("L", 1, 0, 1, 'V', 1))
    e(*step("EPI", 1, 0, 0, None, 0))
    k.stamp(2)
    for sw in ("v_permlane32_swap_b32", "v_permlane16_swap_b32"):
        e(f"v_mov_b32 v{EP}, v{vLs}", f"v_mov_b32 v{EP+1}, v{vLs+1}", "s_nop 1", f"{sw} v{vLs}, v{EP}", f"{sw} v{vLs+1}, v{EP+1}",
          f"v_add_f32 v{vLs}, v{vLs}, v{EP}", f"v_add_f32 v{vLs+1}, v{vLs+1}, v{EP+1}")
    e(f"v_log_f32 v{vLU}, v{vLs}", f"v_log_f32 v{vLU+1}, v{vLs+1}", f"v_rcp_f32 v{vLs}, v{vLs}", f"v_rcp_f32 v{vLs+1}, v{vLs+1}")
    e(f"v_sub_f32 v{vLU}, v{vLU}, v{vNM}", f"v_sub_f32 v{vLU+1}, v{vLU+1}, v{vNM+1}")
    e("s_lshl_b32 s49, s25, 3", "s_add_u32 s49, s49, s26")
    e("s_lshl_b32 s50, s49, 16", "s_lshl_b32 s3, s24, 14", "s_add_u32 s50, s50, s3", f"s_add_u32 s50, s50, {hex(WS_PART)}")
    e("s_lshl_b32 s51, s49, 12", "s_lshl_b32 s3, s24, 10", "s_add_u32 s51, s51, s3", f"s_add_u32 s51, s51, {hex(WS_STAT)}")
    e("s_lshl_b32 s52, s28, 20", "s_lshl_b32 s3, s24, 18", "s_add_u32 s52, s52, s3", "s_lshl_b32 s3, s25, 13", "s_add_u32 s52, s52, s3", f"s_add_u32 s52, s52, {hex(WS_C)}")
    def outloop(merge, flags):
        idx = 0
        for c in range(2):
            for t in range(8):
                b = EP + 12 * (idx & 1); idx += 1
                for h in range(2):
                    for r in range(4):
                        x = b + 4 * h + r
                        if merge:
                            j = (c * 8 + t) * 4 + 2 * h + r // 2
                            if r % 2 == 0: e(f"v_accvgpr_read_b32 v{T+2}, a{aP + j}", f"v_lshlrev_b32 v{x}, 16, v{T+2}", f"v_and_b32 v{x+1}, s53, v{T+2}")
                            e(f"v_mul_f32 v{x}, v{x}, v{T+c}", f"v_fma_f32 v{x}, v{oreg(2*t+h, c)+r}, v{vLs+c}, v{x}")
                        else:
                            e(f"v_mul_f32 v{x}, v{oreg(2*t+h, c)+r}, v{vLs+c}")
                for q in range(4): e(f"v_cvt_pk_bf16_f32 v{b+8+q}, v{b+2*q}, v{b+2*q+1}")
                if t == 4: e("s_add_u32 s52, s52, 4096")
                e(f"buffer_store_dwordx4 {vr(b+8,4)}, v{vL16}, s[{sO}:{sO+3}], s52 offen offset:{1024*(t%4)}{flags}")
            if c == 0: e("s_add_u32 s52, s52, s54")
    e("s_cmp_eq_u32 s27, 0", "s_cbranch_scc1 L2_merge")
    e("s_cmp_eq_u32 s31, 1", "s_cbranch_scc1 L2_final")
    e("s_mov_b32 s52, s50", "s_movk_i32 s54, 4096")
    e(f"buffer_store_dwordx2 {vr(vLU,2)}, v{vL16}, s[{sO}:{sO+3}], s51 offen sc1") if False else None
    e(f"v_mov_b32 v{EP+24}, v{vLU}", f"v_mov_b32 v{EP+25}, v{vLU+1}")
    e(f"buffer_store_dwordx2 {vr(EP+24,2)}, v{vL16}, s[{sO}:{sO+3}], s51 offen sc1")
    outloop(False, " sc1")
    e("s_mov_b32 s31, 1", "s_mov_b32 s28, s26", "s_mov_b32 s29, s44", "s_sub_u32 s39, s44, 4")
    e("s_waitcnt vmcnt(25)", "s_branch L2_seg")
    k.label("L2_final")
    e(f"s_mov_b32 s54, {hex(128*1024 - 4096)}")
    outloop(False, STF)
    e("s_branch L2_end")
    k.label("L2_merge")
    e("s_lshl_b32 s3, s49, 7", f"s_add_u32 s3, s3, {hex(WS_FLAG)}", f"v_mov_b32 v{T}, 0", "s_mov_b32 s55, 0x400000")
    k.label("L2_poll")
    e(f"buffer_load_dword v{T+1}, v{T}, s[{sO}:{sO+3}], s3 offen sc1", "s_waitcnt vmcnt(0)", f"v_readfirstlane_b32 s53, v{T+1}")
    e("s_cmp_eq_u32 s53, 1", "s_cbranch_scc1 L2_got", "s_sleep 2", "s_sub_u32 s55, s55, 1", "s_cbranch_scc0 L2_poll")
    k.label("L2_got")
    e(f"buffer_load_dwordx2 {vr(EP+24,2)}, v{vL16}, s[{sO}:{sO+3}], s51 offen sc1")
    for i in range(16):
        if i and i % 4 == 0: e("s_add_u32 s50, s50, 4096")
        e(f"buffer_load_dwordx4 {ar(aP + 4*i, 4)}, v{vL16}, s[{sO}:{sO+3}], s50 offen offset:{1024*(i%4)} sc1")
    e("s_mov_b32 s53, 0xffff0000", f"s_mov_b32 s54, {hex(128*1024 - 4096)}")
    e("s_waitcnt vmcnt(16)")
    for c in range(2):
        e(f"v_sub_f32 v{EP+c}, v{EP+24+c}, v{vLU+c}")
        e(f"v_exp_f32 v{EP+2+c}, v{EP+c}", f"v_exp_f32 v{EP+4+c}, -v{EP+c}", "s_nop 0")
        e(f"v_add_f32 v{EP+2+c}, 1.0, v{EP+2+c}", f"v_add_f32 v{EP+4+c}, 1.0, v{EP+4+c}")
        e(f"v_rcp_f32 v{EP+2+c}, v{EP+2+c}", f"v_rcp_f32 v{T+c}, v{EP+4+c}", "s_nop 0")
        e(f"v_mul_f32 v{vLs+c}, v{vLs+c}, v{EP+2+c}")
    e("s_waitcnt vmcnt(0)")
    outloop(True, STF)
    k.label("L2_end")
    k.dump_stamps(4, 4, 200 * MB + opt.get('pidx', 0) * MB) if not opt.get('nodump') else None
    k.label("L2_done")
    e("s_endpgm")
    e(*rare_blocks)
    return k, 448, 256, 163840, 256, 256
```

```python
from asmlib import *
from k1 import ln_ops, MB, WS_C, WS_H, WS_HH, WS_SIZE, f2u

def ln_block(e, XN, scale):
    e(*ln_ops(XN, scale))

def gen_proj(which, opt=None):
    opt = opt or {}
    k = K(f'k{which}_kernel'); e = k.e
    k.prof = opt.get('prof', False); k.dbg = opt.get('dbgst')
    L = f"L{which}"
    NS = 32 if which == 3 else 14
    TT = NS * 4
    Aoff = WS_C if which == 3 else WS_HH
    D = 7; RS = 8
    vL16, vA, vDW, vR = 1, 2, 4, 8
    WF, ACC, AR = 16, 48, 128
    sA, sW, sX, sO = 8, 12, 16, 20
    e("s_cmp_ge_u32 s2, 224", f"s_cbranch_scc1 {L}_done")
    k.stamp(0)
    if opt.get('cpf', 1): e(*k.code_pf(k.name, k.name + '_end', 64, 2, 3, 1))
    e(f"s_load_dwordx2 s[4:5], s[0:1], 96", f"s_load_dwordx2 s[6:7], s[0:1], {40 if which == 3 else 72}",
      f"s_load_dwordx2 s[24:25], s[0:1], {0 if which == 3 else 80}")
    e("v_and_b32 v12, 63, v0", "v_lshrrev_b32 v13, 6, v0", f"v_lshlrev_b32 v{vL16}, 4, v12")
    e("v_readfirstlane_b32 s26, v13")
    e("s_and_b32 s3, s2, 7", "s_lshr_b32 s27, s2, 3")
    e("s_mul_i32 s28, s27, 37", "s_lshr_b32 s28, s28, 8")
    e("s_mul_i32 s29, s28, 7", "s_sub_u32 s29, s27, s29")
    e("s_lshl_b32 s3, s3, 2", "s_add_u32 s28, s28, s3")
    e("v_lshrrev_b32 v13, 3, v12", "v_mul_u32_u24 v13, 896, v13", "v_lshrrev_b32 v14, 4, v12", "v_lshlrev_b32 v14, 1, v14",
      "v_and_b32 v15, 7, v12", "v_xor_b32 v14, v14, v15", f"v_lshl_add_u32 v{vDW}, v14, 4, v13")
    for i in range(1, 4): e(f"v_add_u32 v{vDW+i}, {6144*i}, v{vDW}")
    e("v_and_b32 v13, 15, v12", "v_lshrrev_b32 v14, 4, v12", "v_lshrrev_b32 v15, 2, v13", "v_lshl_add_u32 v14, v14, 2, v15")
    e("v_and_b32 v13, 3, v13", "v_lshlrev_b32 v13, 3, v13", "v_lshl_add_u32 v13, v14, 7, v13", "s_lshl_b32 s30, s26, 15", "v_add_u32 v13, s30, v13")
    e("v_bfe_u32 v14, v14, 1, 2")
    for a in range(4): e(f"v_xor_b32 v15, {a}, v14", f"v_lshl_add_u32 v{vR+a}, v15, 5, v13")
    e("s_waitcnt lgkmcnt(0)")
    e(f"s_mul_i32 s31, s28, {4*TT*1024}", f"s_mul_i32 s3, s26, {NS*1024}", "s_add_u32 s31, s31, s3", f"s_add_u32 s31, s31, {hex(Aoff)}")
    e(f"s_add_u32 s{sA}, s4, s31", f"s_addc_u32 s{sA+1}, s5, 0", f"s_mov_b32 s{sA+2}, {hex(3*TT*1024 + NS*1024)}", f"s_mov_b32 s{sA+3}, 0x20000")
    e(f"s_mul_i32 s31, s26, {NS*32*896}", "s_lshl_b32 s3, s29, 7", "s_add_u32 s31, s31, s3")
    e(f"s_add_u32 s{sW}, s6, s31", f"s_addc_u32 s{sW+1}, s7, 0", f"s_sub_u32 s{sW+2}, {TT*32*896}, s31", f"s_mov_b32 s{sW+3}, 0x20000")
    for b in range(4): e(f"s_mov_b32 s{32+b}, {b*TT*1024}")
    e("s_mov_b32 s36, 0")
    def loads(n):
        sl = n % RS
        l = [f"s_add_u32 m0, s30, {sl*4096}"]
        off = (n % 4) * 1024
        if n and n % 4 == 0: l += [f"s_add_u32 s{32+b}, s{32+b}, 4096" for b in range(4)]
        else: l += ["s_nop 0"]
        l += [f"buffer_load_dwordx4 v{vDW+i}, s[{sW}:{sW+3}], s36 offen offset:{1024*i} lds" for i in range(4)]
        l += [f"buffer_load_dwordx4 {vr(AR + 16*sl + 4*b, 4)}, v{vL16}, s[{sA}:{sA+3}], s{32+b} offen offset:{off}" for b in range(4)]
        l += [f"s_add_u32 s36, s36, {32*896}"]
        return l
    def trs(n):
        return [f"ds_read_b64_tr_b16 {vr(WF + 16*(n&1) + 4*a + 2*jj, 2)}, v{vR+a} offset:{(n%RS)*4096 + jj*2048}" for a in range(4) for jj in range(2)]
    for n in range(min(D, NS)): e(*loads(n))
    e(f"s_waitcnt vmcnt({8*(min(D,NS)-1)})")
    k.stamp(1)
    e(*trs(0))
    for n in range(NS):
        mf = []
        for a in range(4):
            for bi in range(4):
                b = bi if a % 2 == 0 else 3 - bi
                t = vr(ACC + (a * 4 + b) * 4, 4)
                mf.append(f"v_mfma_f32_16x16x32_bf16 {t}, {vr(WF + 16*(n&1) + 4*a, 4)}, {vr(AR + 16*(n%RS) + 4*b, 4)}, {t if n else 0}")
        fill = {-1: ["s_waitcnt lgkmcnt(0)"]}
        issued = min(NS, n + D)
        if n + 1 < NS:
            fill[0] = [f"s_waitcnt vmcnt({8*(issued - (n + 2))})"]
            for i, t in enumerate(trs(n + 1)): fill.setdefault(i // 2 + 0, []).append(t)
        if n + D < NS:
            for i, t in enumerate(loads(n + D)): fill.setdefault(4 + (i * 11) // 14, []).append(t)
        e(*weave(mf, fill))
    k.stamp(2)
    if which == 3:
        k.srd(sX, 24, 2048 * 896)
        e("v_and_b32 v13, 15, v0", "v_bfe_u32 v14, v0, 4, 2", "s_lshl_b32 s3, s28, 6", "s_lshl_b32 s31, s26, 4", "s_add_u32 s3, s3, s31")
        e("v_add_u32 v13, s3, v13", "v_mul_u32_u24 v13, 896, v13", "v_lshl_add_u32 v13, v14, 3, v13", "s_lshl_b32 s31, s29, 7")
        for a in range(4): e(f"buffer_load_dwordx2 {vr(AR + 2*a, 2)}, v13, s[{sX}:{sX+3}], s31 offen offset:{32*a}")
        k.srd(sO, 4, 128 * 14 * 1024, add=WS_H)
    else:
        k.srd(sX, 4, 128 * 14 * 1024, add=WS_H)
        e("s_lshl_b32 s3, s28, 2", "s_add_u32 s3, s3, s26", "s_mul_i32 s3, s3, 14", "s_lshl_b32 s31, s29, 1", "s_add_u32 s3, s3, s31", "s_lshl_b32 s31, s3, 10")
        for t in range(2): e(f"buffer_load_dwordx4 {vr(AR + 4*t, 4)}, v{vL16}, s[{sX}:{sX+3}], s31 offen offset:{1024*t}")
        k.srd(sO, 24, 2048 * 896)
    e("s_barrier")
    e("s_lshl_b32 s3, s26, 14", f"v_add_u32 v12, s3, v{vL16}")
    for a in range(4):
        for b in range(4):
            e(f"ds_write_b128 v12, {vr(ACC + (a*4+b)*4, 4)} offset:{(a*4+b)*1024}")
    e("s_lshl_b32 s3, s26, 10", f"v_add_u32 v12, s3, v{vL16}")
    e("s_waitcnt lgkmcnt(0)", "s_barrier")
    for sw in range(4):
        for a in range(4):
            e(f"ds_read_b128 {vr(ACC + (sw*4+a)*4, 4)}, v12 offset:{sw*16384 + a*4096}")
    e("s_mov_b32 s33, 0xffff0000")
    e("s_waitcnt vmcnt(0) lgkmcnt(0)")
    for a in range(4):
        for r in range(4):
            x = ACC + a * 4 + r
            e(f"v_add_f32 v{x}, v{x}, v{x+16}", f"v_add_f32 v{x+32}, v{x+32}, v{x+48}")
        for r in range(4):
            x = ACC + a * 4 + r
            src = AR + 2 * a + r // 2
            e(f"v_lshlrev_b32 v{WF+r}, 16, v{src}" if r % 2 == 0 else f"v_and_b32 v{WF+r}, s33, v{src}")
            e(f"v_add_f32 v{x}, v{x}, v{x+32}")
        for r in range(4):
            x = ACC + a * 4 + r
            e(f"v_add_f32 v{x}, v{x}, v{WF+r}")
        e(f"v_cvt_pk_bf16_f32 v{WF + 8 + 2*a}, v{ACC+a*4}, v{ACC+a*4+1}", f"v_cvt_pk_bf16_f32 v{WF + 9 + 2*a}, v{ACC+a*4+2}, v{ACC+a*4+3}")
    if which == 3:
        e("s_lshl_b32 s3, s28, 2", "s_add_u32 s3, s3, s26", "s_mul_i32 s3, s3, 14", "s_lshl_b32 s31, s29, 1", "s_add_u32 s3, s3, s31", "s_lshl_b32 s31, s3, 10")
        for t in range(2): e(f"buffer_store_dwordx4 {vr(WF + 8 + 4*t, 4)}, v{vL16}, s[{sO}:{sO+3}], s31 offen offset:{1024*t}")
    else:
        e("v_and_b32 v13, 15, v0", "v_bfe_u32 v14, v0, 4, 2", "s_lshl_b32 s3, s28, 6", "s_lshl_b32 s31, s26, 4", "s_add_u32 s3, s3, s31")
        e("v_add_u32 v13, s3, v13", "v_mul_u32_u24 v13, 896, v13", "v_lshl_add_u32 v13, v14, 3, v13", "s_lshl_b32 s31, s29, 7")
        for a in range(4): e(f"buffer_store_dwordx2 {vr(WF + 8 + 2*a, 2)}, v13, s[{sO}:{sO+3}], s31 offen offset:{32*a}")
    k.dump_stamps(4, 4, 200 * MB + opt.get('pidx', 0) * MB)
    k.label(f"{L}_done")
    e("s_endpgm")
    return k, 256, 256, 131072, 224, 256

def gen_k4(opt=None):
    opt = opt or {}
    k = K('k4_kernel'); e = k.e
    k.prof = opt.get('prof', False); k.dbg = opt.get('dbgst')
    vL16, vW, vDW = 1, 2, 16
    Y, XN, EP = 32, 112, 224
    sG, sU, sX, sO = 8, 12, 16, 20
    e("s_cmp_ge_u32 s2, 224", "s_cbranch_scc1 L4_done")
    k.stamp(0)
    if opt.get('cpf', 1): e(*k.code_pf(k.name, k.name + '_end', 64, 30, 31, 2))
    e("s_load_dwordx2 s[4:5], s[0:1], 96", "s_load_dwordx4 s[24:27], s[0:1], 56")
    e("v_and_b32 v22, 63, v0", "v_lshrrev_b32 v23, 6, v0", f"v_lshlrev_b32 v{vL16}, 4, v22")
    e("v_readfirstlane_b32 s32, v23")
    e("v_and_b32 v24, 15, v22", "v_lshrrev_b32 v25, 4, v22")
    e("s_and_b32 s3, s2, 7", "s_lshr_b32 s33, s2, 3")
    e("s_cmp_ge_u32 s33, 14", "s_cselect_b32 s34, 1, 0", "s_mul_i32 s35, s34, 14", "s_sub_u32 s35, s33, s35")
    e("s_lshl_b32 s3, s3, 1", "s_add_u32 s34, s34, s3")
    e("s_waitcnt lgkmcnt(0)")
    k.srd(sX, 4, 128 * 14 * 1024, add=WS_H)
    e("s_lshl_b32 s3, s34, 3", "s_lshl_b32 s36, s32, 1", "s_add_u32 s36, s36, s3")
    e("s_mul_i32 s37, s36, 14336")
    for c in range(2):
        for m in range(14):
            if m % 4 == 0 and (m or c): e(f"s_add_u32 s37, s37, {4096 if m else 2048}")
            e(f"buffer_load_dwordx4 {vr(XN + (m*2+c)*4, 4)}, v{vL16}, s[{sX}:{sX+3}], s37 offen offset:{1024*(m%4)}")
    e("s_lshl_b32 s3, s35, 8")
    for S, P in ((sG, 24), (sU, 26)):
        e(f"s_add_u32 s{S}, s{P}, s3", f"s_addc_u32 s{S+1}, s{P+1}, 0", f"s_sub_u32 s{S+2}, {448*3584}, s3", f"s_mov_b32 s{S+3}, 0x20000")
    k.srd(sO, 4, 128 * 56 * 1024, add=WS_HH)
    e("s_lshl_b32 s3, s32, 3", "v_add_u32 v26, s3, v25", "v_mul_u32_u24 v26, 3584, v26")
    e("v_lshlrev_b32 v27, 1, v25", "v_xor_b32 v27, v27, v24", "v_xor_b32 v28, 8, v27")
    e(f"v_lshl_add_u32 v{vDW}, v27, 4, v26", "v_lshl_add_u32 v28, v28, 4, v26", f"v_add_u32 v{vDW+1}, {4*3584 - 1024}, v28")
    e("s_lshl_b32 s44, s32, 11", "s_mov_b32 s42, 0")
    def dma(slot):
        l = []
        for mat, S in enumerate((sG, sU)):
            l.append(f"s_add_u32 m0, s44, {slot*16384 + mat*8192}")
            l += [f"buffer_load_dwordx4 v{vDW+i}, s[{S}:{S+3}], s42 offen offset:{1024*i} lds" for i in range(2)]
        l.append(f"s_add_u32 s42, s42, {32*3584}")
        return l
    for m in range(10):
        d = dma(m); e(d[0], "s_nop 0", d[1], d[2], d[3], "s_nop 0", *d[4:])
    e("v_lshrrev_b32 v26, 2, v24", "v_lshl_add_u32 v26, v25, 2, v26", "v_and_b32 v27, 3, v24", "v_lshlrev_b32 v27, 3, v27", "v_lshl_add_u32 v27, v26, 8, v27")
    e("v_and_b32 v28, 7, v26")
    for a in range(8): e(f"v_xor_b32 v29, {a}, v28", f"v_lshl_add_u32 v{vW+a}, v29, 5, v27")
    e("s_waitcnt vmcnt(40)")
    k.stamp(1)
    ln_block(e, XN, 1.0)
    e("s_waitcnt vmcnt(24)", "s_barrier")
    k.stamp(2)
    NR, LA = 16, 6
    def rdQ(f, jj):
        m, j = divmod(f, 16)
        off = ((m if m < 10 else m - 10) * 16384) & 0xffff
        a, mat = divmod(j, 2)
        return f"ds_read_b64_tr_b16 {vr(Y + 4*(f % NR) + 2*jj, 2)}, v{vW + a} offset:{off + mat*8192 + jj*4096}"
    mf = []; fill = {}
    def add(g, *t): fill.setdefault(g, []).extend(t)
    for f in range(LA): add(-1, rdQ(f, 0), rdQ(f, 1))
    NF = 14 * 16
    for f in range(NF):
        m, j = divmod(f, 16)
        for ci in range(2):
            c = ci if j % 2 == 0 else 1 - ci
            t = ar((j * 2 + c) * 4, 4)
            mf.append(f"v_mfma_f32_16x16x32_bf16 {t}, {vr(Y + 4*(f % NR), 4)}, {vr(XN + (m*2+c)*4, 4)}, {t if m else 0}")
        g0 = 2 * f; nxt = f + LA
        if f % 2 == 0:
            rem = max(0, min(NF, f + LA) - (f + 2))
            add(g0 - 1, f"s_waitcnt lgkmcnt({2 * rem})")
        if nxt < NF:
            mn, jn = divmod(nxt, 16)
            if jn == 0 and mn == 4:
                add(g0 - 1, "s_waitcnt vmcnt(0)", "s_barrier")
            if jn == 0 and mn in (4, 8):
                add(g0 - 1, *[f"v_add_u32 v{vW+a}, 0x10000, v{vW+a}" for a in range(8)])
            if jn == 0 and mn == 10:
                add(g0 - 1, *[f"v_subrev_u32 v{vW+a}, 0x20000, v{vW+a}" for a in range(8)])
                add(g0 - 1, "s_waitcnt vmcnt(0)", "s_barrier")
            add(g0, rdQ(nxt, 0)); add(g0 + 1, rdQ(nxt, 1))
        if f == 4 * 16 + 2: add(g0, "s_barrier")
        if 4 * 16 + 4 <= f < 4 * 16 + 4 + 28:
            n = f - (4 * 16 + 4)
            add(g0 + (n & 1), dma(n // 7)[n % 7])
    e(*weave(mf, fill))
    k.stamp(3)
    e("s_mul_i32 s37, s36, 57344", "s_lshl_b32 s3, s35, 12", "s_add_u32 s37, s37, s3", "s_nop 4")
    idx = 0
    for c in range(2):
        for t4 in range(4):
            t = EP + 0
            for h in range(2):
                a = 2 * t4 + h
                for r in range(4):
                    e(f"v_accvgpr_read_b32 v{t + 4*h + r}, a{((a*2 + 0) * 2 + c) * 4 + r}", f"v_accvgpr_read_b32 v{t + 8 + 4*h + r}, a{((a*2 + 1) * 2 + c) * 4 + r}")
            for i in range(8): e(f"v_mul_f32 v{t+i}, v{t+i}, v{t+8+i}")
            o = EP + 16 + 4 * (idx & 1); idx += 1
            for q in range(4): e(f"v_cvt_pk_bf16_f32 v{o + q}, v{t + 2*q}, v{t + 2*q + 1}")
            e(f"buffer_store_dwordx4 {vr(o, 4)}, v{vL16}, s[{sO}:{sO+3}], s37 offen offset:{1024 * t4}")
        if c == 0: e("s_add_u32 s37, s37, 57344")
    k.dump_stamps(5, 4, 200 * MB + opt.get('pidx', 0) * MB)
    k.label("L4_done")
    e("s_endpgm")
    return k, 384, 256, 163840, 224, 256
```

```python
import gen, k1, k2, k345, sys, importlib
OUT = 'sequential_preLN__compressed_kv_cla__glu_gated_bilinear__prompt.s'
def full(prof=None, **kw):
    o = lambda n: dict(dict(st=' sc1'), **kw.get(n, {}), prof=(prof == n or prof == 'all'), pidx=int(n[1]) - 1)
    return [k1.gen_k1(o('k1')), k2.gen_k2(o('k2')), k345.gen_proj(3, o('k3')), k345.gen_k4(o('k4')), k345.gen_proj(5, o('k5'))]
def dbgbuild(path, **kw):
    D = {'k1': (0, 0, [0, 1, 3, 4, -1]), 'k2': (1, 5, [0, 1, 2, -1]), 'k3': (2, 9, [0, 1, -1]), 'k4': (3, 12, [0, -1]), 'k5': (4, 14, [0, -1])}
    gen.build(full('all', **{n: dict(kw.get(n, {}), dbgst=D[n]) for n in D}), path)
if __name__ == '__main__':
    gen.build(full(), 'full.s')
    gen.build(full('all'), 'fullp.s')
    gen.build(full(), OUT)
    dbgbuild('dbg.s')
```

```python
from asmlib import *

MB = 1 << 20
WS_K, WS_V, WS_Q, WS_C = 0, 16 * MB, 32 * MB, 48 * MB
WS_PART = 64 * MB
WS_H = 96 * MB
WS_HH = 104 * MB
WS_X = 112 * MB
WS_FLAG = 120 * MB
WS_SIZE = 256 * MB
LOG2E = 1.4426950408889634

def f2u(x):
    import struct
    return struct.unpack('<I', struct.pack('<f', x))[0]

def ln_ops(XN, scale):
    l = []
    e = lambda *a: l.extend(a)
    e("v_mov_b32 v22, 0x3f803f80")
    e("v_mov_b32 v24, 0", "v_mov_b32 v25, 0", "v_mov_b32 v26, 0", "v_mov_b32 v27, 0")
    for m in range(14):
        for r in range(4):
            for c in range(2):
                x = XN + (m * 2 + c) * 4 + r
                e(f"v_dot2c_f32_bf16 v{24+c}, v{x}, v22", f"v_dot2c_f32_bf16 v{26+c}, v{x}, v{x}")
    e("s_nop 2")
    for sw in ("v_permlane32_swap_b32", "v_permlane16_swap_b32"):
        for R in (24, 25, 26, 27): e(f"v_mov_b32 v{R+4}, v{R}")
        e("s_nop 1")
        for R in (24, 25, 26, 27): e(f"{sw} v{R}, v{R+4}")
        for R in (24, 25, 26, 27): e(f"v_add_f32 v{R}, v{R}, v{R+4}")
    e(f"s_mov_b32 s3, {hex(f2u(1.0/448))}", f"s_mov_b32 s62, {hex(f2u(1e-5))}", f"s_mov_b32 s63, {hex(f2u(scale))}")
    for c in range(2):
        e(f"v_mul_f32 v{24+c}, s3, v{24+c}", f"v_mul_f32 v{26+c}, s3, v{26+c}")
        e(f"v_fma_f32 v{26+c}, -v{24+c}, v{24+c}, v{26+c}", f"v_max_f32 v{26+c}, 0, v{26+c}", f"v_add_f32 v{26+c}, s62, v{26+c}")
        e(f"v_rsq_f32 v{26+c}, v{26+c}", "s_nop 0", f"v_mul_f32 v{26+c}, s63, v{26+c}", f"v_mul_f32 v{24+c}, -v{24+c}, v{26+c}")
    e("s_mov_b32 s3, 0xffff0000")
    for m in range(14):
        for c in range(2):
            for r in range(4):
                x = XN + (m * 2 + c) * 4 + r
                t = 28 + 2 * (r & 1)
                e(f"v_lshlrev_b32 v{t}, 16, v{x}", f"v_and_b32 v{t+1}, s3, v{x}",
                  f"v_fma_f32 v{t}, v{t}, v{26+c}, v{24+c}", f"v_fma_f32 v{t+1}, v{t+1}, v{26+c}, v{24+c}",
                  f"v_cvt_pk_bf16_f32 v{x}, v{t}, v{t+1}")
    return l

def merge_streams(a, b):
    out = []; n = len(b); step = len(a) / (n + 0.0)
    j = 0
    for i, x in enumerate(a):
        while j < n and i >= j * step:
            out.extend(b[j]); j += 1
        out.append(x)
    while j < n: out.extend(b[j]); j += 1
    return out

def gen_k1(opt=None):
    opt = opt or {}
    ST = opt.get('st', '')
    k = K(opt.get('name', 'k1_kernel'))
    e = k.e
    END = 'L_done'
    k.prof = opt.get('prof', False); k.dbg = opt.get('dbgst')
    k.stamps = opt.get('stamps', ['start', 'epi', 'qend', 'kvdone', 'kvready', 'attn', 'aend'])
    vLane16, vW, vC, vDC, vDW, vX = 1, 2, 10, 12, 16, 20
    Y, X, XN, EP = 32, 96, 112, 224
    sC, sW, sX, sO, sP = 16, 20, 44, 72, 68
    e("s_cmp_ge_u32 s2, 256", f"s_cbranch_scc1 {END}")
    k.st('start')
    e("s_load_dwordx8 s[4:11], s[0:1], 0", "s_load_dwordx2 s[12:13], s[0:1], 32", "s_load_dwordx2 s[14:15], s[0:1], 96")
    e("v_and_b32 v22, 63, v0", "v_lshrrev_b32 v23, 6, v0", "v_lshlrev_b32 v1, 4, v22")
    e("v_readfirstlane_b32 s32, v23")
    e("v_and_b32 v24, 15, v22", "v_lshrrev_b32 v25, 4, v22")
    e("s_and_b32 s3, s2, 7", "s_lshr_b32 s33, s2, 3")
    e("s_and_b32 s36, s33, 7")
    e("s_lshr_b32 s34, s33, 3")
    e("s_and_b32 s35, s34, 1", "s_lshl_b32 s3, s3, 1", "s_add_u32 s35, s35, s3")
    e("s_lshr_b32 s37, s34, 1")
    e("s_and_b32 s38, s33, 1", "s_add_u32 s38, s38, s3")
    e("s_lshr_b32 s39, s33, 2", "s_sub_u32 s40, 15, s39", "s_bitcmp1_b32 s33, 1", "s_cselect_b32 s39, s39, s40")
    e("s_and_b32 s33, s32, 1", "s_lshr_b32 s34, s32, 1")
    e("v_lshrrev_b32 v26, 3, v22", "s_lshl_b32 s40, s32, 6", "v_add_u32 v26, s40, v26", "v_lshlrev_b32 v26, 11, v26")
    e("v_and_b32 v27, 7, v22", "v_xor_b32 v27, v27, v25", "v_xor_b32 v28, 4, v27")
    e("v_lshl_add_u32 v27, v27, 4, v26", "v_lshl_add_u32 v28, v28, 4, v26")
    for i in range(4):
        e(f"v_add_u32 v{vDC+i}, {i*16384 - 1024*i}, v{27 + (i&1)}")
    e("v_lshrrev_b32 v26, 5, v22", "v_and_b32 v27, 31, v22")
    e("s_lshl_b32 s40, s33, 3")
    e("v_lshlrev_b32 v28, 1, v26", "v_xor_b32 v27, v27, v28", "v_xor_b32 v27, s40, v27")
    e("s_lshl_b32 s40, s32, 3", "v_add_u32 v26, s40, v26", "v_lshlrev_b32 v26, 13, v26")
    e("v_xor_b32 v28, 4, v27")
    e("v_lshl_add_u32 v27, v27, 4, v26", "v_lshl_add_u32 v28, v28, 4, v26")
    for i in range(4):
        e(f"v_add_u32 v{vDW+i}, {i*16384 - 1024*i}, v{27 + (i&1)}")
    e("s_lshl_b32 s24, s32, 12", "s_add_u32 s25, s24, 16384", "s_add_u32 s26, s24, 32768", "s_add_u32 s27, s24, 49152")
    e("s_lshl_b32 s53, s32, 13", "s_add_u32 s53, s53, 65536")
    e("s_lshl_b32 s40, s36, 19", "s_lshl_b32 s42, s35, 9", "s_cmp_eq_u32 s37, 1")
    e("s_waitcnt lgkmcnt(0)")
    e("s_cselect_b32 s48, s12, s10", "s_cselect_b32 s49, s13, s11")
    e(f"s_add_u32 s{sC}, s6, s40", f"s_addc_u32 s{sC+1}, s7, 0", f"s_mov_b32 s{sC+2}, 0x80000", f"s_mov_b32 s{sC+3}, 0x20000")
    e(f"s_add_u32 s{sW}, s48, s42", f"s_addc_u32 s{sW+1}, s49, 0", f"s_sub_u32 s{sW+2}, {1024*8192}, s42", f"s_mov_b32 s{sW+3}, 0x20000")
    e("s_mov_b32 s40, 0", "s_mov_b32 s41, 65536", "s_mov_b32 s42, 0")
    def dmaC(grp):
        return [f"s_add_u32 m0, s53, {4096*grp}" if grp else "s_mov_b32 m0, s53"] + [
            f"buffer_load_dwordx4 v{vDC+i}, s[{sC}:{sC+3}], s{40+grp} offen offset:{1024*i} lds" for i in range(4)]
    def dmaW(slot):
        return [f"s_mov_b32 m0, s{24+slot}"] + [
            f"buffer_load_dwordx4 v{vDW+i}, s[{sW}:{sW+3}], s42 offen offset:{1024*i} lds" for i in range(4)]
    def seq(l): e(l[0], "s_nop 0", *l[1:])
    def pro(n):
        seq(dmaC(n & 1))
        if n & 1:
            e("s_add_u32 s40, s40, 128", "s_add_u32 s41, s41, 128", "s_add_u32 s53, s53, 32768")
        seq(dmaW(n))
        e(f"s_add_u32 s42, s42, {32*8192}")
    XR = 232
    k.srd(28, 14, 0x40000 + 128, add=WS_FLAG)
    e("v_mov_b32 v29, 0x40000", "buffer_load_dword v240, v29, s[28:31], 0 offen")
    e("s_lshl_b32 s3, s2, 3", "s_lshl_b32 s43, s32, 1", "s_add_u32 s3, s3, s43", "s_mul_i32 s3, s3, 896")
    e(f"s_add_u32 s{sX}, s4, s3", f"s_addc_u32 s{sX+1}, s5, 0", f"s_movk_i32 s{sX+2}, 896", f"s_mov_b32 s{sX+3}, 0x20000")
    e(f"buffer_load_dwordx4 {vr(XR,4)}, v{vLane16}, s[{sX}:{sX+3}], 0 offen")
    e(f"s_add_u32 s{sX}, s{sX}, 896", f"s_addc_u32 s{sX+1}, s{sX+1}, 0")
    e(f"buffer_load_dwordx4 {vr(XR+4,4)}, v{vLane16}, s[{sX}:{sX+3}], 0 offen")
    pro(0); pro(1)
    if opt.get('cpf', 1): e(*k.code_pf(k.name, 'L1_epi', 64, 30, 224, 2))
    e("s_lshl_b32 s3, s38, 9", "s_add_u32 s56, s8, s3", "s_addc_u32 s57, s9, 0", f"s_sub_u32 s58, {448*8192}, s3")
    e("v_lshrrev_b32 v26, 2, v24", "v_lshl_add_u32 v27, v25, 3, v26", "v_lshlrev_b32 v27, 9, v27")
    e("v_and_b32 v28, 3, v24", "v_lshl_add_u32 v27, v28, 3, v27")
    e("s_lshl_b32 s3, s34, 8", "v_add_u32 v27, s3, v27")
    e("v_and_b32 v28, 1, v25", "v_lshl_add_u32 v28, v28, 2, v26")
    for a in range(8):
        e(f"v_xor_b32 v29, {a}, v28", f"v_lshl_add_u32 v{vW+a}, v29, 5, v27")
    e("s_lshl_b32 s3, s33, 7", "v_add_u32 v26, s3, v24", "v_lshlrev_b32 v26, 7, v26", "v_add_u32 v26, 65536, v26")
    e("v_lshrrev_b32 v27, 1, v24", "v_xor_b32 v27, v27, v25", "v_xor_b32 v28, 4, v27")
    e(f"v_lshl_add_u32 v{vC}, v27, 4, v26", f"v_lshl_add_u32 v{vC+1}, v28, 4, v26")
    PS = opt.get('ps', 4)
    def pfdesc(S, bufs, CH, t=59):
        e(f"s_mov_b32 s{S}, s{bufs[0][0]}", f"s_mov_b32 s{S+1}, s{bufs[0][0]+1}", f"s_mov_b32 s{S+2}, {bufs[0][1]}", f"s_mov_b32 s{S+3}, 0x20000", f"s_mov_b32 s{t}, 0")
        first = -(-bufs[0][1] // CH)
        for ptr, size in bufs[1:]:
            e(f"s_cmp_ge_u32 s2, {first}", f"s_cselect_b32 s{S}, s{ptr}, s{S}", f"s_cselect_b32 s{S+1}, s{ptr+1}, s{S+1}",
              f"s_cselect_b32 s{S+2}, {size}, s{S+2}", f"s_cselect_b32 s{t}, {first}, s{t}")
            first += -(-size // CH)
        assert first <= 256, first
        e(f"s_sub_u32 s{t}, s2, s{t}", f"s_mul_i32 s{t}, s{t}, {CH}")
        e(f"s_add_u32 s{S}, s{S}, s{t}", f"s_addc_u32 s{S+1}, s{S+1}, 0", f"s_sub_u32 s{S+2}, s{S+2}, s{t}", f"s_cselect_b32 s{S+2}, 0, s{S+2}",
          f"s_min_u32 s{S+2}, s{S+2}, {CH}")
    pfdesc(sP, [(8, 448*8192)], 16384)
    k.tailpf0 = lambda: e("s_load_dwordx2 s[52:53], s[0:1], 40", "s_load_dwordx4 s[56:59], s[0:1], 56", "s_load_dwordx2 s[54:55], s[0:1], 72")
    k.tailpf = lambda: (e("s_waitcnt lgkmcnt(0)"), pfdesc(64, [(52, 4096*896), (56, 448*3584), (58, 448*3584), (54, 1792*896)], 34816, 60))
    e(f"v_lshlrev_b32 v23, {PS}, v0", "s_mov_b32 s59, 0")
    k.srd(sO, 14, WS_C)
    pfi = [f"buffer_load_dword v{EP}, v23, s[{sP}:{sP+3}], s59 offen", f"s_add_u32 s59, s59, {256 << PS}"]
    def rdW(a, jj, slot, p):
        d = Y + 32 * p + 4 * a + 2 * jj
        return f"ds_read_b64_tr_b16 {vr(d,2)}, v{vW+a} offset:{slot*16384 + jj*2048}"
    def rdC(b, sp):
        return f"ds_read_b128 {vr(X + 4*(b&3),4)}, v{vC+sp} offset:{b*2048}"
    e("s_lshr_b32 s3, s2, 1", "s_mul_i32 s3, s3, 14336", f"s_add_u32 s3, s3, {hex(WS_X)}")
    e(f"s_add_u32 s{sX}, s14, s3", f"s_addc_u32 s{sX+1}, s15, 0", f"s_movk_i32 s{sX+2}, 14336")
    e("s_lshl_b32 s3, s32, 5", f"s_add_u32 s3, s3, {128*1024}", "v_lshlrev_b32 v20, 7, v22", "v_add_u32 v20, s3, v20")
    e("v_lshlrev_b32 v241, 4, v0", f"v_add_u32 v241, {128*1024}, v241")
    e("v_lshrrev_b32 v242, 3, v0", "v_and_b32 v243, 7, v0", "v_lshlrev_b32 v243, 4, v243", "v_lshl_add_u32 v242, v242, 8, v243")
    e("s_and_b32 s48, s2, 1", "s_lshl_b32 s48, s48, 7", "v_add_u32 v243, 0x2000, v242")
    for i in range(256): e(f"v_accvgpr_write_b32 a{i}, 0")
    e(f"s_waitcnt vmcnt({16 + (2 if opt.get('cpf', 1) else 0)})")
    k.st('xr')
    e("v_add_u32 v240, 1, v240", "v_or_b32 v31, 0x80000000, v240", "v_mov_b32 v21, 0x3f803f80", "v_readfirstlane_b32 s7, v31")
    e("v_mov_b32 v24, 0", "v_mov_b32 v25, 0", "v_mov_b32 v26, 0", "v_mov_b32 v27, 0")
    for r in range(4):
        for i in range(2):
            e(f"v_dot2c_f32_bf16 v{24+i}, v{XR+4*i+r}, v21", f"v_dot2c_f32_bf16 v{26+i}, v{XR+4*i+r}, v{XR+4*i+r}")
    e("s_nop 2")
    for ro in (8, 4, 2, 1):
        for R in (24, 25, 26, 27): e(f"v_add_f32_dpp v{R}, v{R}, v{R} row_ror:{ro} row_mask:0xf bank_mask:0xf")
    for sw in ("v_permlane32_swap_b32", "v_permlane16_swap_b32"):
        for R in (24, 25, 26, 27): e(f"v_mov_b32 v{R+220}, v{R}")
        for R in (24, 25, 26, 27): e(f"{sw} v{R}, v{R+220}")
        for R in (24, 25, 26, 27): e(f"v_add_f32 v{R}, v{R}, v{R+220}")
    e(f"s_mov_b32 s3, {hex(f2u(1.0/448))}", f"s_mov_b32 s62, {hex(f2u(1e-5))}", f"s_mov_b32 s63, {hex(f2u(LOG2E/16))}")
    for c in range(2):
        e(f"v_mul_f32 v{24+c}, s3, v{24+c}", f"v_mul_f32 v{26+c}, s3, v{26+c}")
        e(f"v_fma_f32 v{26+c}, -v{24+c}, v{24+c}, v{26+c}", f"v_max_f32 v{26+c}, 0, v{26+c}", f"v_add_f32 v{26+c}, s62, v{26+c}")
        e(f"v_rsq_f32 v{26+c}, v{26+c}", "s_nop 0", f"v_mul_f32 v{26+c}, s63, v{26+c}", f"v_mul_f32 v{24+c}, -v{24+c}, v{26+c}")
    e("s_mov_b32 s3, 0xffff0000")
    for i in range(2):
        for r in range(4):
            x = XR + 4 * i + r; t = 244 + 2 * (r & 1)
            e(f"v_lshlrev_b32 v{t}, 16, v{x}", f"v_and_b32 v{t+1}, s3, v{x}",
              f"v_fma_f32 v{t}, v{t}, v{26+i}, v{24+i}", f"v_fma_f32 v{t+1}, v{t+1}, v{26+i}, v{24+i}", f"v_cvt_pk_bf16_f32 v{x}, v{t}, v{t+1}")
        e(f"ds_write_b128 v20, {vr(XR+4*i,4)} offset:{16*i}")
    pro(2); pro(3)
    e(*pfi)
    e("s_mov_b32 s55, s53", "s_sub_u32 s54, s53, 65536", "s_mov_b32 s60, 32768", "s_mov_b32 s61, -65536")
    e(f"s_waitcnt vmcnt({21 + (2 if opt.get('cpf', 1) else 0)}) lgkmcnt(0)", "s_barrier")
    k.st('loop')
    e(f"ds_read_b128 {vr(XR,4)}, v241", f"ds_read_b128 {vr(XR+4,4)}, v241 offset:4096")
    for a in range(8):
        e(rdW(a, 0, 0, 0), rdW(a, 1, 0, 0))
    e(rdC(0, 0), rdC(1, 0))
    e(f"s_add_u32 s3, s2, 1280", "s_lshl_b32 s3, s3, 7", "s_lshl_b32 s43, s32, 2", "s_add_u32 s3, s3, s43", "v_mov_b32 v30, s3")
    e("v_lshrrev_b32 v29, 2, v22", "v_and_b32 v28, 3, v22", "v_lshlrev_b32 v28, 2, v28", "v_lshl_add_u32 v29, v29, 7, v28")
    e("s_lshl_b32 s3, s39, 11", f"s_add_u32 s3, s3, {1280*128}", "v_add_u32 v29, s3, v29")
    e("s_waitcnt lgkmcnt(15)")
    e(f"buffer_store_dwordx4 {vr(XR,4)}, v242, s[{sX}:{sX+3}], s48 offen sc1", f"buffer_store_dwordx4 {vr(XR+4,4)}, v243, s[{sX}:{sX+3}], s48 offen sc1")
    e("s_lshl_b32 s3, s39, 3", "s_lshl_b32 s43, s32, 1", "s_add_u32 s3, s3, s43", "s_mul_i32 s3, s3, 14336", f"s_add_u32 s3, s3, {hex(WS_X)}")
    e(f"s_add_u32 s{sX}, s14, s3", f"s_addc_u32 s{sX+1}, s15, 0", f"s_movk_i32 s{sX+2}, 28672")
    e("s_mov_b32 s50, 7", "s_movk_i32 s51, 0x44")
    e("s_cmp_eq_u32 s37, 1", "s_cbranch_scc1 L1_loopV")
    wcnt = [3, 3, 3, 3, 2, 2, 0, 0]
    ncp = 3 if opt.get('cpf', 1) else 0
    xl = []
    for i in range(28):
        c, m = divmod(i, 14)
        xl.append(f"buffer_load_dwordx4 {vr(XN + (m*2+c)*4, 4)}, v{20 + i // 4 % 2}, s[{sX}:{sX+3}], s{43 if i // 8 % 2 == 0 else 48} offen offset:{1024*(i%4)} sc1")
    def kstep(n, isV, last=False):
        p = n & 1
        mf = []; fill = {}
        def add(g, *t): fill.setdefault(g, []).extend(t)
        wq = [(a, jj) for a in range(8) for jj in range(2)]
        dC, dW = dmaC(n & 1), dmaW(n & 3)
        fin = last and n == 3
        for b in range(8):
            for ai in range(8):
                a = ai if b % 2 == 0 else 7 - ai
                wreg, creg = vr(Y + 32 * p + 4 * a, 4), vr(X + 4 * (b & 3), 4)
                if isV:
                    t = ar((b * 8 + a) * 4, 4); mf.append(f"v_mfma_f32_16x16x32_bf16 {t}, {creg}, {wreg}, {t}")
                else:
                    t = ar(((2 * (b >> 1) + (a & 1)) * 8 + (b & 1) * 4 + (a >> 1)) * 4, 4); mf.append(f"v_mfma_f32_16x16x32_bf16 {t}, {wreg}, {creg}, {t}")
            g0 = b * 8
            if fin: add(g0 - 1, f"s_waitcnt lgkmcnt({1 if b < 7 else 0})")
            else: add(g0 - 1, f"s_waitcnt lgkmcnt({wcnt[b-2] + 1 + wcnt[b-1]})")
            pos = g0
            if b == 0:
                vm = [17, 13, 17, 12][n] if not last else [17 + ncp, 16 + ncp, 23 + ncp, 63][n]
                add(pos, f"s_waitcnt vmcnt({vm})", "s_barrier"); pos += 1
            if b < 6: add(pos, rdC(b + 2, n & 1))
            elif not fin: add(pos, rdC(b - 6, (n + 1) & 1))
            pos += 1
            for _ in range(wcnt[b]):
                a, jj = wq.pop(0)
                if not fin: add(pos, rdW(a, jj, (n + 1) & 3, p ^ 1))
                pos += 1
            i = b & 3
            if not last:
                d = dC if b < 4 else dW
                if i == 0: add(pos - 1, d[0])
                add(pos + (0 if b == 0 else 1), d[1 + i])
            else:
                if b < 7:
                    add(pos + (0 if b == 0 else 1), xl[7 * n + b])
                    if 7 * n + b == 15: add(pos + 2, "s_movk_i32 s43, 16384", "s_movk_i32 s48, 24576")
                if b == 4: add(g0 + 6, dW[0])
                if b >= 4: add(g0 + 7, dW[1 + i])
            if b == 5 and n & 1 == 0:
                add(g0 + 7, "s_cmp_eq_u32 s54, s55", "s_cselect_b32 s52, s61, s60")
            if b == 6:
                add(g0 + 4, f"v_add_u32 v{vC + (n & 1)}, s52, v{vC + (n & 1)}")
                if n & 1 and not last:
                    add(g0 + 5, "s_mov_b32 s53, s54", "s_add_u32 s54, s54, s52")
                    add(g0 + 6, "s_add_u32 s40, s40, 128", "s_add_u32 s41, s41, 128")
                if n & 1 and last and not fin: add(g0 + 5, "s_add_u32 s54, s54, s52")
            if b == 7:
                add(g0 + (5 if not last else 7), f"s_add_u32 s42, s42, {32*8192}")
        return mf, fill
    pf = []
    for isV in (0, 1):
        lab = "L1_loopV" if isV else "L1_loopK"
        k.label(lab)
        for n in range(4):
            mf, fill = kstep(n, isV)
            if n == 3:
                fill.setdefault(58, []).extend(["s_bitcmp1_b32 s51, s50", f"s_cbranch_scc1 {lab}_hk", f"{lab}_hr:"])
                pf += [f"{lab}_hk:", "s_cmp_eq_u32 s50, 6", f"s_cbranch_scc0 {lab}_h2", "buffer_store_dword v31, v30, s[28:31], 0 offen sc1", f"s_branch {lab}_hr",
                       f"{lab}_h2:", "buffer_load_dword v28, v29, s[28:31], 0 offen sc1", f"s_branch {lab}_hr"]
                fill.setdefault(60, []).append(pfi[0]); fill.setdefault(61, []).append(pfi[1])
                fill.setdefault(62, []).extend(["s_sub_u32 s50, s50, 1", "s_cmp_lg_u32 s50, 0"])
                fill.setdefault(63, []).extend([f"s_cbranch_scc1 {lab}"])
            e(*weave(mf, fill))
        k.st('peel')
        e("v_cmp_ne_u32 vcc, s7, v28", f"s_cbranch_vccnz {lab}_xw", f"{lab}_xr:")
        pf += [f"{lab}_xw:", "s_mov_b32 s3, 0x10000", f"{lab}_xp:", "buffer_load_dword v28, v29, s[28:31], 0 offen sc1", "s_waitcnt vmcnt(0)", "v_cmp_ne_u32 vcc, s7, v28",
               f"s_cbranch_vccz {lab}_xr", "s_sleep 2", "s_sub_u32 s3, s3, 1", f"s_cbranch_scc0 {lab}_xp", f"s_branch {lab}_xr"]
        e(f"v_mov_b32 v20, v{vLane16}", f"v_add_u32 v21, 0x1000, v{vLane16}", "s_mov_b32 s43, 0", "s_movk_i32 s48, 8192")
        if opt.get('cpf', 1): e(*k.code_pf('L1_epi', 'L2_end', 64, 30, 31, 3))
        e(f"s_mov_b32 s{sW}, s56", f"s_mov_b32 s{sW+1}, s57", f"s_mov_b32 s{sW+2}, s58", "s_mov_b32 s42, 0")
        for n in range(4):
            mf, fill = kstep(n, isV, last=True)
            e(*weave(mf, fill))
        if not isV: e("s_branch L1_epi")
    k.label("L1_epi")
    e("s_barrier")
    k.st('epi')
    e("s_lshl_b32 s3, s34, 8")
    for a in range(8): e(f"v_subrev_u32 v{vW+a}, s3, v{vW+a}")
    e("s_lshl_b32 s64, s35, 20", "s_lshl_b32 s3, s36, 17", "s_add_u32 s64, s64, s3", "s_lshl_b32 s3, s33, 16", "s_add_u32 s64, s64, s3")
    e("s_lshl_b32 s3, s37, 24", "s_add_u32 s64, s64, s3")
    e("s_lshl_b32 s3, s34, 13", "s_add_u32 s64, s64, s3", "s_add_u32 s64, s64, 32768")
    if opt.get('lin'): e("s_lshl_b32 s64, s2, 17", "s_lshl_b32 s3, s33, 16", "s_add_u32 s64, s64, s3", "s_lshl_b32 s3, s34, 13", "s_add_u32 s64, s64, s3")
    hold = lambda i: 64 + 4 * i if i < 12 else 240 + 4 * (i - 12)
    def conv(idx, dst):
        p, j = divmod(idx, 8)
        p ^= 2
        t = EP + 8 * (idx & 1)
        l = [f"v_accvgpr_read_b32 v{t + 4*h + r}, a{((2*p + h) * 8 + j) * 4 + r}" for h in range(2) for r in range(4)]
        return l + [f"v_cvt_pk_bf16_f32 v{dst + q}, v{t + 2*q}, v{t + 2*q + 1}" for q in range(4)]
    def sto(idx, src):
        p, j = divmod(idx, 8)
        p ^= 2
        l = [f"buffer_store_dwordx4 {vr(src, 4)}, v{vLane16}, s[{sO}:{sO+3}], s64 offen offset:{1024*(j&3)}{ST}"]
        if j == 3: l += ["s_add_u32 s64, s64, 4096"]
        if j == 7: l += ["s_add_u32 s64, s64, 12288" if p != 3 else f"s_sub_u32 s64, s64, {65536 - 12288}"]
        return l
    NS0 = opt.get('ns0', 8)
    order = []
    for i in range(max(16, NS0)):
        e(*conv(i, hold(i % 16)))
        if i < NS0: e(*sto(i, hold(i % 16))); order.append('S')
        if 1 <= i <= 6:
            d = dmaW(0)
            e(f"s_add_u32 m0, s24, {(i+3)*16384}", "s_nop 0", *d[1:], f"s_add_u32 s42, s42, {32*8192}"); order += ['D'] * 4
    ydma = len(order) - 1 - max(i for i, t in enumerate(order) if t == 'D')
    early = opt['early'](k)
    k.st('ln')
    e(f"s_waitcnt vmcnt({24 + NS0})", "s_barrier")
    k.st('q')
    NR, LA = 8, 6
    def rdQ(f, jj):
        m, j = divmod(f, 16)
        off = ((m if m < 10 else m - 10) * 16384) & 0xffff
        d = Y + 4 * (f % NR) + 2 * jj
        return f"ds_read_b64_tr_b16 {vr(d,2)}, v{vW + (j & 7)} offset:{off + (j >> 3) * 256 + jj * 2048}"
    mf = []; fill = {}
    def add(g, *t): fill.setdefault(g, []).extend(t)
    for f in range(LA): add(-1, rdQ(f, 0), rdQ(f, 1))
    NF = 14 * 16
    ep_gap = {}
    G0, G1 = 2, opt.get('g1', 260)
    sg = lambda i: (G0 if NS0 < 16 else 34) + ((i - NS0) * (G1 - G0)) // max(1, 31 - NS0)
    for i in range(NS0, 32):
        if i >= 16:
            l = conv(i, hold(i - 16))
            g0 = max(2, sg(i - 16) + 3 if i - 16 >= NS0 else 2, sg(i) - 30)
            for n, x in enumerate(l): ep_gap.setdefault(g0 + n, []).append(x)
            assert g0 + 12 < sg(i), (i, g0, sg(i))
        ep_gap.setdefault(sg(i), []).extend(sto(i, hold(i % 16)))
    lastdma = 2 * (4 * 16 + 4 + 30) + 1
    waitg = 2 * (160 - LA) - 1
    young = sum(1 for g, l in ep_gap.items() for x in l if 'buffer_store' in x and lastdma <= g < waitg)
    GP, GL, GC = opt.get('gp', 350), opt.get('gl', 400), opt.get('gc', 440)
    young += (lastdma <= GP < waitg) + (GL < waitg)
    for f in range(NF):
        m, j = divmod(f, 16)
        for ci in range(2):
            c = ci if j % 2 == 0 else 1 - ci
            t = ar(128 + (j * 2 + c) * 4, 4)
            mf.append(f"v_mfma_f32_16x16x32_bf16 {t}, {vr(Y + 4*(f % NR), 4)}, {vr(XN + (m*2+c)*4, 4)}, {t if m else 0}")
        g0 = 2 * f
        nxt = f + LA
        if f % 2 == 0:
            rem = max(0, min(NF, f + LA) - (f + 2))
            add(g0 - 1, f"s_waitcnt lgkmcnt({2 * rem})")
        if nxt < NF:
            mn, jn = divmod(nxt, 16)
            if jn == 0 and mn == 4:
                y4 = ydma + (GP < g0 - 1) + sum(1 for g, l in ep_gap.items() for x in l if 'buffer_store' in x and g < g0 - 1)
                add(g0 - 1, f"s_waitcnt vmcnt({y4})", "s_barrier")
            if jn == 0 and mn in (4, 8):
                add(g0 - 1, *[f"v_add_u32 v{vW+a}, 0x10000, v{vW+a}" for a in range(8)])
            if jn == 0 and mn == 10:
                add(g0 - 1, *[f"v_subrev_u32 v{vW+a}, 0x20000, v{vW+a}" for a in range(8)])
                add(g0 - 1, f"s_waitcnt vmcnt({young if not opt.get('nowait') else 63})", "s_barrier")
            add(g0, rdQ(nxt, 0)); add(g0 + 1, rdQ(nxt, 1))
        if f == 4 * 16 + 2: add(g0, "s_barrier")
        if 4 * 16 + 4 <= f < 4 * 16 + 4 + 32 and (f % 2 == 0):
            n = (f - (4 * 16 + 4)) // 2
            if n % 4 == 0: add(g0, f"s_mov_b32 m0, s{24 + n // 4}")
            add(g0 + 1, dmaW(0)[1 + n % 4])
            if n % 4 == 3: add(g0 + 2, f"s_add_u32 s42, s42, {32*8192}")
    for g, l in ep_gap.items(): add(g, *l)
    add(2 * 164, "s_barrier")
    dmag = [2 * (4 * 16 + 4 + 2 * n) + 1 for n in range(16)]
    assert all(g < GP for g, l in ep_gap.items() for x in l if 'buffer_store' in x)
    laststore = max([-1] + [g for g, l in ep_gap.items() for x in l if 'buffer_store' in x])
    add(GP, f"s_waitcnt vmcnt({sum(1 for g in dmag if laststore < g <= GP)})", *early['publish'])
    young += (lastdma <= GP < waitg) + (GL < waitg)
    add(GL, *early['load'])
    add(GC, *early['check'])
    e(*weave(mf, fill))
    k.st('qend')
    k.side = pf
    return k
```

```python
from asmlib import *
from k1 import MB, WS_K, WS_V, WS_Q, WS_C, WS_PART, WS_FLAG, WS_SIZE, f2u
WS_STAT = WS_PART + 16 * MB
NA = 40

def gen_k2(k, opt=None, early=False):
    opt = opt or {}
    e = k.e
    THR = opt.get('thr', 2.0 ** 20)
    STF = opt.get('st', ' sc1')
    LD = ' sc1'
    vL16, vB, vD, vLB = 1, 2, 3, 4
    vQ, vNM, vL = 5, 7, 9
    T = 13
    CI, S, E, P, EP, O = 16, 32, 64, 80, 96, 128
    aQ, aR, aP = 0, 64, 128
    sK, sV, sQ, sO, sF = 8, 16, 20, 24, 28
    sS = 34
    NEG = -1e30
    ci = lambda kt, c: CI + (kt * 2 + c) * 4
    sreg = lambda par, kt, c: S + 16 * par + (kt * 2 + c) * 4
    ereg = lambda kt, c: E + (kt * 2 + c) * 4
    preg = lambda par, c: P + 8 * par + 4 * c
    oreg = lambda i, c: O + (i * 2 + c) * 4
    lreg = lambda par, c: vL + 2 * par + c

    def dmaK(q, vd=vD): return [f"s_mov_b32 m0, s{sS + (q^1)}"] + [f"buffer_load_dwordx4 v{vd}, s[{sK}:{sK+3}], s32 offen offset:{1024*i}{LD} lds" for i in range(4)]
    def dmaV(q, vd=vD): return [f"s_add_u32 m0, s{sS + (q^1)}, 16384"] + [f"buffer_load_dwordx4 v{vd}, s[{sV}:{sV+3}], s32 offen offset:{1024*i}{LD} lds" for i in range(4)] + ["s_add_u32 s32, s32, 16384"]
    def xstep(st, vd):
        d = dmaK(0, vd); l = [d[0], "s_nop 0", *d[1:]]
        d = dmaV(0, vd)
        l += [d[0], "s_nop 0", *d[1:]] if st >= 2 else [d[-1]]
        return l
    def publish(off_sreg):
        return ["s_lshl_b32 s3, s44, 2", f"v_mov_b32 v{T}, s3", f"v_mov_b32 v{T+1}, s7", f"buffer_store_dword v{T+1}, v{T}, s[{sF}:{sF+3}], s{off_sreg} offen sc1"]
    uid = [0]
    def polladdr(nfl):
        return [f"v_bfe_u32 v{T}, v0, 2, 4", f"v_min_u32 v{T}, {nfl - 1}, v{T}", f"v_and_b32 v{T+1}, 3, v0", f"v_lshlrev_b32 v{T+1}, 2, v{T+1}", f"v_lshl_add_u32 v{T}, v{T}, 7, v{T+1}"]
    def poll(off_sreg, nfl):
        uid[0] += 1; u = uid[0]
        return polladdr(nfl) + ["s_mov_b32 s55, 0x10000", f"L2_poll{u}:",
                f"buffer_load_dword v{T+1}, v{T}, s[{sF}:{sF+3}], s{off_sreg} offen sc1", "s_waitcnt vmcnt(0)", f"v_cmp_ne_u32 vcc, s7, v{T+1}",
                f"s_cbranch_vccz L2_got{u}", "s_sleep 2", "s_sub_u32 s55, s55, 1", f"s_cbranch_scc0 L2_poll{u}", f"L2_got{u}:"]
    rare_blocks = []
    first3 = lambda: xstep(0, 20) + [f"s_add_u32 s{sS+1}, s{sS+1}, 32768"] + xstep(1, 20) + [f"s_add_u32 s{sS+1}, s{sS+1}, 32768"] + xstep(2, 20)
    if early:
        e("s_lshl_b32 s6, s35, 1", "s_add_u32 s6, s6, s37", "s_lshl_b32 s6, s6, 3", "s_add_u32 s6, s6, s36", "s_lshl_b32 s6, s6, 7")
        e("s_mov_b32 s44, s32")
        e("s_and_b32 s3, s2, 7", "s_lshr_b32 s46, s2, 3", "s_and_b32 s45, s46, 1", "s_lshl_b32 s3, s3, 1", "s_add_u32 s45, s45, s3")
        e("s_lshr_b32 s46, s46, 1", "s_and_b32 s47, s46, 1", "s_lshr_b32 s46, s46, 1")
        e("s_lshl_b32 s4, s45, 3", "s_add_u32 s4, s4, s46", "s_lshl_b32 s4, s4, 7", f"s_add_u32 s5, s4, {384*128}", f"s_add_u32 s4, s4, {256*128}")
        e("s_lshl_b32 s3, s46, 2", "s_add_u32 s49, s3, 4", "s_mov_b32 s48, s46", "s_mov_b32 s50, 0")
        e("s_lshl_b32 s41, s46, 7", "s_add_u32 s41, s41, 64", f"s_sub_u32 s43, {64 - NA}, s3")
        e("s_sub_u32 s52, 64, s3", f"s_cmp_ge_u32 s46, {(64 - NA) // 4 + ((64 - NA) % 4 > 0)}", "s_cselect_b32 s41, -1, s41", f"s_cselect_b32 s52, s52, {NA}", "s_cselect_b32 s51, 0, s43", "s_cselect_b32 s53, 0, 2")
        e("s_sub_u32 s3, 15, s46", "s_cmp_eq_u32 s47, 0")
        e("s_cselect_b32 s48, s3, s48", "s_cselect_b32 s49, s52, s49", "s_cselect_b32 s50, s53, s50", "s_cselect_b32 s41, -1, s41", "s_cselect_b32 s51, s51, 0")
        e("s_sub_u32 s39, s49, 4", "s_mov_b32 s33, 0", "s_lshl_b32 s37, s44, 12", f"v_add_u32 v20, s37, v{vL16}")
        e("s_lshl_b32 s3, s45, 20", "s_lshl_b32 s51, s51, 14", "s_add_u32 s51, s51, s3")
        e(f"s_add_u32 s{sK}, s14, s51", f"s_addc_u32 s{sK+1}, s15, 0", f"s_lshl_b32 s{sK+2}, s49, 14", f"s_mov_b32 s{sK+3}, 0x20000")
        e(f"s_add_u32 s{sV}, s{sK}, {hex(WS_V - 32768)}", f"s_addc_u32 s{sV+1}, s{sK+1}, 0", f"s_add_u32 s{sV+2}, s{sK+2}, 32768", f"s_mov_b32 s{sV+3}, 0x20000")
        e("s_mov_b32 s32, 0", f"s_add_u32 s{sS+1}, s37, 65536", "s_lshl_b32 s52, s45, 11", "s_mov_b32 s53, 0")
        k.early_side = ["L2_early:"] + first3() + ["s_mov_b32 s53, 1", "s_branch L2_early_ret"]
        return {'publish': publish(6),
                'load': polladdr(16) + [f"buffer_load_dword v{T+1}, v{T}, s[{sF}:{sF+3}], s52 offen sc1"],
                'check': ["s_waitcnt vmcnt(0)", f"v_cmp_ne_u32 vcc, s7, v{T+1}", "s_cbranch_vccz L2_early", "L2_early_ret:"]}
    rare_blocks += k.early_side + k.side
    e("s_barrier")
    e("s_cmp_eq_u32 s53, 1", "s_cbranch_scc1 L2_ready")
    e(*poll(52, 16), *first3())
    k.label("L2_ready")
    k.st('kvready')
    e(f"s_mov_b32 s{sS+1}, s37", *xstep(3, 20))
    e(f"s_add_u32 s{sS+1}, s37, 32768", f"s_add_u32 s{sS}, s37, 65536", f"s_add_u32 s36, s37, {5*32768}")
    k.tailpf0()
    for c in range(2):
        for t in range(8):
            b = EP + 12 * (t & 1)
            for h in range(2):
                for r in range(4): e(f"v_accvgpr_read_b32 v{b + 4*h + r}, a{128 + ((2*t + h)*2 + c)*4 + r}")
            for q in range(4): e(f"v_cvt_pk_bf16_f32 v{b + 8 + q}, v{b + 2*q}, v{b + 2*q + 1}")
            for q in range(4): e(f"v_accvgpr_write_b32 a{aQ + (c*8 + t)*4 + q}, v{b + 8 + q}")
    k.tailpf()
    e(f"v_mov_b32 v{vD}, v20", f"v_subrev_u32 v{vLB}, s37, v{vL16}", f"v_add_u32 v{vB}, 0x10000, v{vL16}")
    e("s_lshl_b32 s3, s45, 20", f"s_add_u32 s3, s3, {hex(WS_Q)}", f"s_add_u32 s{sQ}, s14, s3", f"s_addc_u32 s{sQ+1}, s15, 0", f"s_mov_b32 s{sQ+2}, 0x100000", f"s_mov_b32 s{sQ+3}, 0x20000")
    k.srd(sO, 14, WS_SIZE)
    def qio(op, flags):
        l = ["s_lshl_b32 s54, s46, 16", "s_lshl_b32 s55, s44, 14", "s_add_u32 s54, s54, s55"]
        for i in range(16):
            if i and i % 4 == 0: l.append("s_add_u32 s54, s54, 4096")
            l.append(f"{op} {ar(aQ + 4*i, 4)}, v{vL16}, s[{sQ}:{sQ+3}], s54 offen offset:{1024*(i%4)}{flags}")
        return l
    e(f"s_mov_b32 s38, {hex(f2u(THR))}", "s_mov_b32 s79, 0", "v_lshlrev_b32 v124, 5, v0", "s_mov_b32 s63, 0", "s_mov_b32 s70, s52", "s_mov_b32 s71, s53")
    e("s_cmp_eq_u32 s41, -1", f"s_cselect_b32 s62, {opt.get('l2at', -2)}, -1")
    for r in range(O, O + 128, 2): e(f"v_mov_b64 {vr(r,2)}, 0")
    e("s_waitcnt vmcnt(20)", "s_barrier")
    e("s_lshl_b32 s54, s46, 16", "s_lshl_b32 s55, s44, 14", "s_add_u32 s54, s54, s55")
    e(f"s_add_u32 s72, s{sQ}, s54", f"s_addc_u32 s73, s{sQ+1}, 0", "s_mov_b32 s75, 0x20000", "s_movk_i32 s76, 4096", "s_movk_i32 s77, 8192", "s_movk_i32 s78, 12288")
    e("s_cmp_eq_u32 s50, 2", "s_cselect_b32 s74, 16384, 0", "s_cselect_b32 s68, s4, 0")
    qst = [f"buffer_store_dwordx4 {ar(aQ + 4*i, 4)}, v{vL16}, s[72:75], {['0','s76','s77','s78'][i//4]} offen offset:{1024*(i%4)} sc1" for i in range(16)]
    k.st('attn')

    def kfrag(f):
        t, kt = divmod(f, 2); return (t >> 2) * 8 + kt * 4 + (t & 3)
    def rdK(f): return f"ds_read_b128 {ar(aR + 4*f, 4)}, v{vB} offset:{kfrag(f)*1024}"
    def rdV(f): return f"ds_read_b128 {ar(aR + 4*f, 4)}, v{vB} offset:{16384 + f*1024}"
    def maskblock(lab):
        l = [f"{lab}:", "s_mov_b32 s39, 0", f"v_mov_b32 v{T+2}, {hex(f2u(NEG))}"]
        for c in range(2):
            l.append(f"v_subrev_u32 v{T}, s40, v{vQ+c}")
            for kt in range(2):
                for i in range(4):
                    l.append(f"v_cmp_le_i32 s[{52+2*i}:{53+2*i}], {16*kt + i}, v{T}")
                for i in range(4):
                    l.append(f"v_cndmask_b32 v{ci(kt, c) + i}, v{T+2}, v{vNM+c}, s[{52+2*i}:{53+2*i}]")
        l += ["s_cmp_eq_u32 s40, s41", "s_add_u32 s40, s40, 32" , "s_cmp_eq_u32 s40, s41"]
        l = l[:-3] + ["s_cmp_eq_u32 s40, s41", f"s_cbranch_scc0 {lab}_ns",
              "s_mov_b32 s41, -1", "s_mov_b32 s32, 0",
              f"s_lshl_b32 s{sK+2}, s43, 14", f"s_add_u32 s{sV+2}, s{sK+2}, 32768",
              f"{lab}_ns:", "s_add_u32 s40, s40, 32", f"s_branch {lab}_ret"]
        return l
    def xlane(op, r0, r1):
        l = []
        for sw in ("v_permlane32_swap_b32", "v_permlane16_swap_b32"):
            l += [f"v_mov_b32 v{EP}, v{r0}", f"v_mov_b32 v{EP+1}, v{r1}", "s_nop 1", f"{sw} v{r0}, v{EP}", f"{sw} v{r1}, v{EP+1}",
                  f"{op} v{r0}, v{r0}, v{EP}", f"{op} v{r1}, v{r1}, v{EP+1}"]
        return l
    def rowmax(par, pre=None):
        l = []
        for c in range(2):
            a, b = sreg(par, 0, c), sreg(par, 1, c)
            l += [f"v_max3_f32 v{T+c}, v{a}, v{a+1}, v{a+2}", f"v_max3_f32 v{T+c}, v{T+c}, v{a+3}, v{b}",
                  f"v_max3_f32 v{T+c}, v{T+c}, v{b+1}, v{b+2}", f"v_max_f32 v{T+c}, v{T+c}, v{b+3}"]
        return l + (pre or []) + xlane("v_max_f32", T, T + 1)
    def shift(regs_by_c):
        return [f"v_sub_f32 v{r}, v{r}, v{T+c}" for c in range(2) for r in regs_by_c(c)]
    def quads(fn, c): return [fn(kt, c) + r for kt in range(2) for r in range(4)]
    def smops(par):
        seqs = []
        for c in range(2):
            src = quads(lambda kt, c: sreg(par, kt, c), c); dst = quads(ereg, c)
            seq = []
            for i in range(10):
                if i < 8: seq.append(('x', f"v_exp_f32 v{dst[i]}, v{src[i]}"))
                if 1 <= i <= 8:
                    seq.append(('v', f"v_add_f32 v{lreg(par,c)}, v{lreg(par^1,c) if i == 1 else lreg(par,c)}, v{dst[i-1]}"))
                if i in (2, 4, 6, 8): seq.append(('v', f"v_cvt_pk_bf16_f32 v{preg(par,c) + i//2 - 1}, v{dst[i-2]}, v{dst[i-1]}"))
            seqs.append(seq)
        a, b = seqs
        return a[:-2] + b[:1] + a[-2:] + b[1:-2] + [('v', f"v_add_f32 v{T}, v{lreg(par,0)}, v{lreg(par,1)}")] + b[-2:]
    def rare(par, lab, hasQK):
        l = [f"{lab}:", "s_nop 7", "s_nop 3"]
        pre = []
        for c in range(2):
            pre += [f"v_log_f32 v{EP+c}, v{lreg(par^1,c)}", "s_nop 0", f"v_max3_f32 v{T+c}, v{T+c}, v{EP+c}, 0"]
        l += rowmax(par, pre)
        l += shift(lambda c: quads(lambda kt, c: sreg(par, kt, c), c))
        if hasQK: l += shift(lambda c: quads(lambda kt, c: sreg(par ^ 1, kt, c), c))
        l += shift(lambda c: quads(ci, c)) + shift(lambda c: [vNM + c])
        l += [f"v_exp_f32 v{T}, -v{T}", f"v_exp_f32 v{T+1}, -v{T+1}", "s_nop 0"]
        for c in range(2):
            l.append(f"v_mul_f32 v{lreg(par^1,c)}, v{lreg(par^1,c)}, v{T+c}")
            for i in range(16):
                for r in range(4): l.append(f"v_mul_f32 v{oreg(i,c)+r}, v{oreg(i,c)+r}, v{T+c}")
        l += [t for _, t in smops(par)]
        l += ["s_nop 1", f"s_branch {lab}_ret"]
        return l

    def step(name, q, hasPV, hasQK, hasSM, nxt, par, extra=None, vm=24, sts=None):
        uid[0] += 1; u = uid[0]
        mf = []; reads = []
        if hasPV:
            for i in range(16):
                for cc in range(2):
                    c = cc if i % 2 == 0 else 1 - cc
                    o = vr(oreg(i, c), 4)
                    mf.append(f"v_mfma_f32_16x16x32_bf16 {o}, {ar(aR + 4*i, 4)}, {vr(preg(par^1, c), 4)}, {o}")
            reads += [rdV(f) for f in range(16)]
        if hasQK:
            for f in range(16):
                t, kt = divmod(f, 2)
                for cc in range(2):
                    c = cc if kt == 0 else 1 - cc
                    d = vr(sreg(par ^ 1, kt, c), 4)
                    src = vr(ci(kt, c), 4) if t == 0 else d
                    mf.append(f"v_mfma_f32_16x16x32_bf16 {d}, {ar(aR + 4*f, 4)}, {ar(aQ + (c*8+t)*4, 4)}, {src}")
            reads += [rdK(f) for f in range(16)]
        nM = len(mf); nF = nM // 2
        fill = {}; cost = {}
        def add(g, t, w=1):
            fill.setdefault(g, []).append(t); cost[g] = cost.get(g, 0) + w
        Bg = nM - 17
        own = list(range(8, nF)); span = Bg - 7
        rgap = {}
        for i, f in enumerate(own):
            g = (i * span) // max(1, len(own) - 1) if len(own) > 8 else i
            rgap[f] = max(g, 2 * f - 31)
        if hasQK:
            g = 0 if hasPV else -1
            add(g, "s_sub_u32 s39, s39, 1"); add(g, f"s_cbranch_scc1 L2_mk{u}"); add(g, f"L2_mk{u}_ret:", 0)
            rare_blocks.extend(maskblock(f"L2_mk{u}"))
        for f in range(0, nF, 4):
            last = f + 3
            if 2 * f - 1 >= Bg: continue
            if last < 8: young = (7 - last) + sum(1 for x in own if rgap[x] <= 2 * f - 2)
            else: young = sum(1 for x in own if x > last and rgap[x] <= 2 * f - 2)
            add(2 * f - 1, f"s_waitcnt lgkmcnt({min(15, young)})")
        for f in own: add(rgap[f], reads[f])
        dm = dmaK(q) + dmaV(q)
        if nM == 64: pos = [1, 2, 6, 11, 16, 20, 21, 26, 30, 35, 36]
        else: pos = [0, 1, 2, 3, 4, 5, 6, 8, 9, 10, 11]
        for g, t in zip(pos, dm): add(g, t)
        add(Bg - 3, f"s_add_u32 s{sS + (q^1)}, s{sS + q}, 32768")
        add(Bg - 2, f"s_cmp_eq_u32 s{sS + (q^1)}, s36"); add(Bg - 2, f"s_cselect_b32 s{sS + (q^1)}, s37, s{sS + (q^1)}")
        add(Bg - 1, f"v_add_u32 v{vB}, s{sS + (q^1)}, v{vLB}")
        add(Bg, f"s_waitcnt vmcnt({vm}) lgkmcnt(0)"); add(Bg, "s_barrier")
        if nxt:
            for f in range(8): add(Bg + 1 + 2 * f, rdK(f) if nxt == 'K' else rdV(f))
        for i, t in enumerate(sts or []): add(2 + 4 * i - (i > 3), t)
        ops = list(extra or [])
        if hasSM: ops = smops(par) + [('v', f"v_add_f32 v{T}, v{T}, v{lreg(par,1)}"), ('v', f"v_cmp_lt_f32 vcc, s38, v{T}")]
        if ops:
            g = 3; end = nM - 2
            wt = lambda o: 2 if o[0] == 'x' else 1
            total = sum(map(wt, ops))
            cap = 2
            avail = lambda x: max(0, cap - cost.get(x, 0)) if x != Bg else 0
            while sum(avail(x) for x in range(g, end)) < total: cap += 1
            rate = total / sum(avail(x) for x in range(g, end))
            budget = 0.0; i = 0
            for x in range(g, end):
                budget += avail(x) * rate
                while i < len(ops) and budget >= wt(ops[i]) - 0.5:
                    add(x, ops[i][1], wt(ops[i])); budget -= wt(ops[i]); i += 1
            while i < len(ops): add(end, ops[i][1]); i += 1
        if hasSM:
            add(nM - 1, f"s_cbranch_vccnz L2_rare{u}"); add(nM - 1, f"L2_rare{u}_ret:", 0)
            rare_blocks.extend(rare(par, f"L2_rare{u}", hasQK))
        out = weave(mf, fill)
        if name.startswith('M'):
            for pat in opt.get('kill', []):
                out = [x for x in out if not x.startswith(pat) or x.endswith(':')]
        return out

    k.label("L2_seg")
    for f in range(8): e(rdK(f))
    e("v_and_b32 v13, 15, v0", "v_bfe_u32 v14, v0, 4, 2", "v_lshlrev_b32 v14, 2, v14", "v_sub_u32 v13, v13, v14")
    e("s_lshl_b32 s40, s48, 7", "s_lshl_b32 s3, s44, 5", "s_add_u32 s3, s3, s40")
    e(f"v_add_u32 v{vQ}, s3, v13", f"v_add_u32 v{vQ+1}, 16, v{vQ}")
    for r in range(vNM, vNM + 6): e(f"v_mov_b32 v{r}, 0")
    for r in range(CI, CI + 16, 2): e(f"v_mov_b64 {vr(r,2)}, 0")
    e(*step("PRO", 0, 0, 1, 0, 'K', 1, sts=qst[:8], vm=28))
    k.st('s_pro')
    e("s_nop 7")
    e(*rowmax(0))
    e(*shift(lambda c: quads(lambda kt, c: sreg(0, kt, c), c)), *shift(lambda c: quads(ci, c)), *shift(lambda c: [vNM + c]))
    k.st('s_f')
    e("s_sub_u32 s42, s49, 2", "s_lshr_b32 s42, s42, 1")
    e(*step("F", 1, 0, 1, 1, 'V', 0, sts=qst[8:], vm=36))
    e("s_mov_b32 s74, 0")
    k.st('s_loop')
    e("s_sub_u32 s42, s42, 1", "s_cbranch_scc1 L2_tail")
    k.label("L2_loop")
    e(*step("M1", 0, 1, 1, 1, 'V', 1, vm=25))
    e(*step("M0", 1, 1, 1, 1, 'V', 0, vm=24))
    e("buffer_load_dword v125, v124, s[64:67], s79 offen", "s_add_u32 s79, s79, 8192", "s_add_u32 s79, s79, s63")
    e("s_cmp_eq_u32 s42, s62", "s_cbranch_scc1 L2_l2pf", "L2_l2pf_ret:")
    rare_blocks.extend(["L2_l2pf:", "s_lshr_b32 s3, s2, 3", f"s_mul_i32 s3, s3, {4096*896//32}", "s_add_u32 s64, s70, s3", "s_addc_u32 s65, s71, 0",
                        f"s_mov_b32 s66, {4096*896//32}", "s_mov_b32 s79, 0", f"s_movk_i32 s63, {opt.get('l2step', 32768) - 8192}", f"v_lshlrev_b32 v124, {opt.get('l2sh', 7)}, v0", "s_branch L2_l2pf_ret"])
    e("s_cmp_lg_u32 s68, 0", "s_cbranch_scc1 L2_pub1", "L2_pub1_ret:")
    e("s_sub_u32 s42, s42, 1", "s_cbranch_scc0 L2_loop")
    k.label("L2_tail")
    k.st('s_tail')
    e("s_cmp_lg_u32 s68, 0", "s_cbranch_scc1 L2_pub2", "L2_pub2_ret:")
    for i in (1, 2):
        rare_blocks.extend([f"L2_pub{i}:", "s_waitcnt vmcnt(16)"] + publish(68) + ["s_mov_b32 s68, 0", f"s_branch L2_pub{i}_ret"])
    e("s_cmp_eq_u32 s47, 1", "s_cbranch_scc0 L2_noq", "s_cmp_eq_u32 s33, 0", "s_cbranch_scc0 L2_noq", f"s_cmp_ge_u32 s46, {(64 - NA) // 4 + ((64 - NA) % 4 > 0)}", "s_cbranch_scc1 L2_noq")
    e(*poll(4, 1))
    e(*qio("buffer_load_dwordx4", LD))
    e("s_mov_b32 s33, 2")
    k.label("L2_noq")
    e("s_lshl_b32 s56, s45, 3", "s_add_u32 s56, s56, s46")
    e("s_lshl_b32 s57, s56, 16", "s_lshl_b32 s3, s44, 14", "s_add_u32 s57, s57, s3", f"s_add_u32 s57, s57, {hex(WS_PART)}")
    e("s_lshl_b32 s58, s56, 12", "s_lshl_b32 s3, s44, 10", "s_add_u32 s58, s58, s3", f"s_add_u32 s58, s58, {hex(WS_STAT)}")
    e("s_lshl_b32 s3, s44, 2", "v_mov_b32 v122, s3", f"buffer_load_dword v123, v122, s[{sF}:{sF+3}], s5 offen sc1", "s_mov_b32 s63, 0")
    if opt.get('cpf', 1): e(*k.code_pf('L2_end', 'L_done', 20, 126, 127, 3))
    e(*step("L", 0, 1, 0, 1, 'V', 1))
    def pload():
        l = [f"buffer_load_dwordx2 {vr(EP+24,2)}, v{vL16}, s[{sO}:{sO+3}], s58 offen sc1"]
        for i in range(16):
            if i and i % 4 == 0: l.append("s_add_u32 s57, s57, 4096")
            l.append(f"buffer_load_dwordx4 {vr(16 + 4*i, 4)}, v{vL16}, s[{sO}:{sO+3}], s57 offen offset:{1024*(i%4)} sc1")
        return l
    e("s_cmp_eq_u32 s50, 2", "s_cbranch_scc1 L2_pre", "L2_pre_ret:")
    rare_blocks.extend(["L2_pre:", "s_waitcnt vmcnt(8)", "v_cmp_ne_u32 vcc, s7, v123", "s_cbranch_vccnz L2_pre_ret"] + pload() + ["s_mov_b32 s63, 1", "s_branch L2_pre_ret"])
    e(*step("EPI", 1, 1, 0, 0, None, 0, vm=16))
    k.st('aend')
    vLs, vLU = lreg(1, 0), lreg(0, 0)
    A2, B2 = 122, 14
    e(*xlane("v_add_f32", vLs, vLs + 1))
    e(f"v_log_f32 v{vLU}, v{vLs}", f"v_log_f32 v{vLU+1}, v{vLs+1}", f"v_rcp_f32 v{A2}, v{vLs}", f"v_rcp_f32 v{A2+1}, v{vLs+1}")
    e(f"v_sub_f32 v{vLU}, v{vLU}, v{vNM}", f"v_sub_f32 v{vLU+1}, v{vLU+1}, v{vNM+1}")
    e("s_lshl_b32 s59, s48, 20", "s_lshl_b32 s3, s44, 18", "s_add_u32 s59, s59, s3", "s_lshl_b32 s3, s45, 13", "s_add_u32 s59, s59, s3", f"s_add_u32 s59, s59, {hex(WS_C)}")
    e(f"s_mov_b32 s60, {hex(128*1024 - 4096)}")
    e("s_lshl_b32 s69, s48, 4", "s_add_u32 s69, s69, s45", "s_lshl_b32 s69, s69, 7", f"s_add_u32 s69, s69, {512*128}")
    def outloop(merge, flags):
        idx = 0
        for c in range(2):
            for t in range(8):
                b = EP + 12 * (idx & 1); idx += 1
                s2 = "op_sel_hi:[1,0]" if c == 0 else "op_sel:[0,1] op_sel_hi:[1,1]"
                s3 = "op_sel_hi:[1,0,1]" if c == 0 else "op_sel:[0,1,0] op_sel_hi:[1,1,1]"
                for q in range(4):
                    x = b + 2 * q; o = oreg(2 * t + q // 2, c) + 2 * (q & 1)
                    if merge:
                        j = 16 + (c * 8 + t) * 4 + q
                        e(f"v_lshlrev_b32 v{x}, 16, v{j}", f"v_and_b32 v{x+1}, s61, v{j}")
                        e(f"v_pk_mul_f32 {vr(x,2)}, {vr(x,2)}, {vr(B2,2)} {s2}", f"v_pk_fma_f32 {vr(x,2)}, {vr(o,2)}, {vr(A2,2)}, {vr(x,2)} {s3}")
                    else:
                        e(f"v_pk_mul_f32 {vr(x,2)}, {vr(o,2)}, {vr(A2,2)} {s2}", f"v_mov_b64 {vr(o,2)}, 0")
                for q in range(4): e(f"v_cvt_pk_bf16_f32 v{b+8+q}, v{b+2*q}, v{b+2*q+1}")
                if t == 4: e("s_add_u32 s59, s59, 4096")
                e(f"buffer_store_dwordx4 {vr(b+8,4)}, v{vL16}, s[{sO}:{sO+3}], s59 offen offset:{1024*(t%4)}{flags}")
            if c == 0: e("s_add_u32 s59, s59, s60")
    e("s_cmp_eq_u32 s50, 2", "s_cbranch_scc1 L2_merge")
    e("s_cmp_eq_u32 s50, 1", "s_cbranch_scc0 L2_final")
    e("s_mov_b32 s59, s57", "s_movk_i32 s60, 4096", "s_mov_b32 s69, s5")
    e(f"v_mov_b32 v{EP+24}, v{vLU}", f"v_mov_b32 v{EP+25}, v{vLU+1}")
    e(f"buffer_store_dwordx2 {vr(EP+24,2)}, v{vL16}, s[{sO}:{sO+3}], s58 offen sc1")
    k.label("L2_final")
    outloop(False, " sc1")
    e("s_cmp_eq_u32 s50, 1", "s_cbranch_scc0 L2_np", "s_waitcnt vmcnt(0)", *publish(69), "s_branch L2_end", "L2_np:")
    e("s_cmp_eq_u32 s33, 2", "s_cbranch_scc0 L2_end")
    e("s_mov_b32 s33, 1", "s_sub_u32 s48, 15, s46", "s_mov_b32 s49, s43", "s_mov_b32 s39, -1", "s_mov_b32 s50, 1", "s_mov_b32 s68, s69", f"s_mov_b32 s62, {opt.get('l2at', -2)}", "s_mov_b32 s63, 0")
    e("s_waitcnt vmcnt(24)", "s_branch L2_seg")
    k.label("L2_merge")
    e("s_cmp_eq_u32 s63, 1", "s_cbranch_scc1 L2_have")
    e(*poll(5, 1), *pload())
    k.label("L2_have")
    k.st('s_got')
    e("s_mov_b32 s61, 0xffff0000")
    e("s_waitcnt vmcnt(16)")
    for c in range(2):
        e(f"v_sub_f32 v{EP+c}, v{EP+24+c}, v{vLU+c}")
        e(f"v_exp_f32 v{EP+2+c}, v{EP+c}", f"v_exp_f32 v{EP+4+c}, -v{EP+c}", "s_nop 0")
        e(f"v_add_f32 v{EP+2+c}, 1.0, v{EP+2+c}", f"v_add_f32 v{EP+4+c}, 1.0, v{EP+4+c}")
        e(f"v_rcp_f32 v{EP+2+c}, v{EP+2+c}", f"v_rcp_f32 v{B2+c}, v{EP+4+c}", "s_nop 0")
        e(f"v_mul_f32 v{A2+c}, v{A2+c}, v{EP+2+c}")
    e("s_waitcnt vmcnt(0)")
    outloop(True, STF)
    k.label("L2_end")
    k.st('s_end')
    k.rare = rare_blocks
    k.publish, k.poll, k.polladdr = publish, poll, polladdr
    return k
```

```python
from asmlib import *
from k1 import ln_ops, MB, WS_C, WS_H, WS_HH, WS_SIZE, f2u

def tail_ids(k, flip=0):
    e = k.e
    bc = 's_bitcmp0_b32' if flip else 's_bitcmp1_b32'
    e("s_and_b32 s3, s2, 7", "s_lshr_b32 s74, s2, 3")
    e("s_sub_u32 s72, 15, s3", f"{bc} s74, 1", "s_cselect_b32 s72, s3, s72")
    e("s_lshr_b32 s73, s74, 2", "s_lshl_b32 s73, s73, 1", "s_and_b32 s3, s74, 1", "s_add_u32 s73, s73, s3")
    e("s_cmp_ge_u32 s73, 7", "s_cselect_b32 s75, 1, 0", "s_cselect_b32 s71, 7, 0", "s_sub_u32 s71, s73, s71")
    e("s_lshl_b32 s70, s72, 1", "s_add_u32 s70, s70, s75")
    e("s_and_b32 s76, s2, 6", "s_add_u32 s76, s76, s75", "s_sub_u32 s3, 15, s76", f"{bc} s74, 1", "s_cselect_b32 s76, s76, s3")
    e("s_and_b32 s3, s2, 1", "s_mul_i32 s73, s3, 7", "s_add_u32 s73, s73, s71")

def pub(k, nyoung):
    k.e(f"s_waitcnt vmcnt({nyoung})", *k.publish(69))

def probe(k, poll_sreg, nfl):
    return k.polladdr(nfl) + [f"buffer_load_dword v15, v13, s[28:31], s{poll_sreg} offen sc1"]

def wait_flags(k, poll_sreg, nfl, lab, wait):
    k.e("s_cmp_eq_u32 s44, 0", f"s_cbranch_scc0 {lab}", wait, "v_cmp_ne_u32 vcc, s7, v15", f"s_cbranch_vccz {lab}", *k.poll(poll_sreg, nfl))
    k.label(lab)
    k.e("s_barrier")

def gen_proj(k, which, opt=None):
    opt = opt or {}
    e = k.e
    L = f"L{which}"
    NS = 32 if which == 3 else 14
    TT = NS * 4
    Aoff = WS_C if which == 3 else WS_HH
    D = 7; RA = 8; RS = 10; NP = opt.get('np', 15 if which == 3 else 4); RES = 240
    vL16, vDW, vR = 1, 4, 8
    WF, ACC, AR = 16, 48, 128
    sA, sW, sX, sO = 8, 16, 20, 24
    NST = 16 if which == 3 else 8
    e(f"s_load_dwordx2 s[10:11], s[0:1], {40 if which == 3 else 72}", f"s_load_dwordx2 s[12:13], s[0:1], {0 if which == 3 else 80}")
    if which == 3:
        tail_ids(k, opt.get('flip', 1))
        e("s_cmp_ge_u32 s74, 28", f"s_cbranch_scc0 {L}_act")
        pub(k, 0)
        e("s_branch L_fin")
        k.label(f"{L}_act")
    e("v_and_b32 v12, 63, v0")
    e("v_lshrrev_b32 v13, 3, v12", "v_mul_u32_u24 v13, 896, v13", "v_lshrrev_b32 v14, 4, v12", "v_lshlrev_b32 v14, 1, v14",
      "v_and_b32 v15, 7, v12", "v_xor_b32 v14, v14, v15", f"v_lshl_add_u32 v{vDW}, v14, 4, v13")
    for i in range(1, 4): e(f"v_add_u32 v{vDW+i}, {6144*i}, v{vDW}")
    e("v_and_b32 v13, 15, v12", "v_lshrrev_b32 v14, 4, v12", "v_lshrrev_b32 v15, 2, v13", "v_lshl_add_u32 v14, v14, 2, v15")
    e("v_and_b32 v13, 3, v13", "v_lshlrev_b32 v13, 3, v13", "v_lshl_add_u32 v13, v14, 7, v13", "s_mul_i32 s37, s44, 40960", "v_add_u32 v13, s37, v13")
    e("v_bfe_u32 v14, v14, 1, 2")
    for a in range(4): e(f"v_xor_b32 v15, {a}, v14", f"v_lshl_add_u32 v{vR+a}, v15, 5, v13")
    e("s_waitcnt lgkmcnt(0)")
    e(f"s_mul_i32 s38, s44, {NS*32*896}", "s_lshl_b32 s3, s71, 7", "s_add_u32 s38, s38, s3")
    e(f"s_add_u32 s{sW}, s10, s38", f"s_addc_u32 s{sW+1}, s11, 0", f"s_sub_u32 s{sW+2}, {TT*32*896}, s38", f"s_mov_b32 s{sW+3}, 0x20000")
    e(f"s_mul_i32 s38, s70, {4*TT*1024}", f"s_mul_i32 s3, s44, {NS*1024}", "s_add_u32 s38, s38, s3", f"s_add_u32 s38, s38, {hex(Aoff)}")
    e(f"s_add_u32 s{sA}, s14, s38", f"s_addc_u32 s{sA+1}, s15, 0", f"s_mov_b32 s{sA+2}, {hex(3*TT*1024 + NS*1024)}", f"s_mov_b32 s{sA+3}, 0x20000")
    for b in range(4): e(f"s_mov_b32 s{32+b}, {b*TT*1024}")
    e("s_mov_b32 s36, 0")
    vmq = []
    def track(l, tag):
        for x in l:
            if x.startswith('buffer_'): vmq.append(tag)
        return l
    def vwait(*tags):
        last = max(i for i, t in enumerate(vmq) if t in tags)
        return f"s_waitcnt vmcnt({min(63, len(vmq) - 1 - last)})"
    def ldW(n):
        return track([f"s_add_u32 m0, s37, {(n % RS)*4096}", "s_nop 0"] +
               [f"buffer_load_dwordx4 v{vDW+i}, s[{sW}:{sW+3}], s36 offen offset:{1024*i} lds" for i in range(4)] + [f"s_add_u32 s36, s36, {32*896}"], ('W', n))
    def ldA(n):
        l = [f"s_add_u32 s{32+b}, s{32+b}, 4096" for b in range(4)] if n and n % 4 == 0 else []
        return track(l + [f"buffer_load_dwordx4 {vr(AR + 16*(n % RA) + 4*b, 4)}, v{vL16}, s[{sA}:{sA+3}], s{32+b} offen offset:{(n%4)*1024} sc1" for b in range(4)], ('A', n))
    def wreg(n, a, cnt=4, o=0):
        return ar(16 * n + 4 * a + o, cnt) if n < NP else vr(WF + 16 * (n & 1) + 4 * a + o, cnt)
    def trs(n):
        return [f"ds_read_b64_tr_b16 {wreg(n, a, 2, 2*jj)}, v{vR+a} offset:{(n%RS)*4096 + jj*2048}" for a in range(4) for jj in range(2)]
    e(f"s_waitcnt vmcnt({NST}) lgkmcnt(0)", "s_barrier")
    k.st(f'p{which}a')
    vmq.append('S')
    NE = opt.get('ne', 4)
    for n in range(NE): e(*ldW(n))
    e(vwait('S'), *track(k.publish(69), 'F'))
    k.st(f'p{which}b')
    for n in range(NE, RS): e(*ldW(n))
    k.st(f'p{which}c')
    if which == 3:
        k.srd(sX, 12, 2048 * 896)
        e("v_and_b32 v13, 15, v0", "v_bfe_u32 v14, v0, 4, 2", "s_lshl_b32 s3, s70, 6", "s_lshl_b32 s38, s44, 4", "s_add_u32 s3, s3, s38")
        e("v_add_u32 v13, s3, v13", "v_mul_u32_u24 v13, 896, v13", "v_lshl_add_u32 v2, v14, 3, v13", "s_lshl_b32 s38, s71, 7")
        e(*track([f"buffer_load_dwordx2 {ar(RES + 2*a, 2)}, v2, s[{sX}:{sX+3}], s38 offen offset:{32*a}" for a in range(4)], 'X'))
    e("s_lshl_b32 s39, s72, 11", f"s_add_u32 s39, s39, {(512 if which == 3 else 1024)*128}")
    for n in range(NP + 1):
        if n == max(0, NP - opt.get('pb', 3)): e(*track(probe(k, 39, 16 if which == 3 else 14), 'P'))
        if n < NP: e(vwait(('W', n)), *trs(n))
        if n >= 1 and n - 1 + RS < NS:
            e(f"s_waitcnt lgkmcnt({8 if n < NP else 0})", *ldW(n - 1 + RS))
    k.st(f'p{which}d')
    wait_flags(k, 39, 16 if which == 3 else 14, f"{L}_s", vwait('P'))
    k.st(f'p{which}go')
    for n in range(D): e(*ldA(n))
    for n in range(NS):
        mf = []
        for a in range(4):
            for bi in range(4):
                b = bi if a % 2 == 0 else 3 - bi
                t = vr(ACC + (a * 4 + b) * 4, 4)
                mf.append(f"v_mfma_f32_16x16x32_bf16 {t}, {wreg(n, a)}, {vr(AR + 16*(n%RA) + 4*b, 4)}, {t if n else 0}")
        fill = {-1: [vwait(('A', n)) + " lgkmcnt(0)"]}
        if NP <= n + 1 < NS:
            fill[0] = [vwait(('W', n + 1))]
            for i, t in enumerate(trs(n + 1)): fill.setdefault(i // 2, []).append(t)
        l = []
        if n + D < NS: l += ldA(n + D)
        if n >= NP and n + RS < NS: l += ldW(n + RS)
        for i, t in enumerate(l): fill.setdefault(4 + (i * 11) // 15, []).append(t)
        out = weave(mf, fill)
        for pat in opt.get('kill', []): out = [x for x in out if pat not in x]
        e(*out)
    k.st(f'p{which}end')
    e("s_barrier")
    e("s_lshl_b32 s3, s44, 14", f"v_add_u32 v12, s3, v{vL16}")
    for a in range(4):
        for b in range(4):
            e(f"ds_write_b128 v12, {vr(ACC + (a*4+b)*4, 4)} offset:{(a*4+b)*1024}")
    e("s_lshl_b32 s3, s44, 10", f"v_add_u32 v12, s3, v{vL16}")
    if which == 3: k.srd(sO, 14, 128 * 14 * 1024, add=WS_H)
    else: k.srd(sO, 12, 2048 * 896)
    e("s_waitcnt lgkmcnt(0)", "s_barrier")
    for sw in range(4):
        for a in range(4):
            e(f"ds_read_b128 {vr(ACC + (sw*4+a)*4, 4)}, v12 offset:{sw*16384 + a*4096}")
    e("s_mov_b32 s33, 0xffff0000")
    for i in range(8): e(f"v_accvgpr_read_b32 v{AR+i}, a{RES+i}")
    e("s_waitcnt lgkmcnt(0)")
    for a in range(4):
        for r in range(4):
            x = ACC + a * 4 + r
            e(f"v_add_f32 v{x}, v{x}, v{x+16}", f"v_add_f32 v{x+32}, v{x+32}, v{x+48}")
        for r in range(4):
            x = ACC + a * 4 + r
            src = AR + 2 * a + r // 2
            e(f"v_lshlrev_b32 v{WF+r}, 16, v{src}" if r % 2 == 0 else f"v_and_b32 v{WF+r}, s33, v{src}")
            e(f"v_add_f32 v{x}, v{x}, v{x+32}")
        for r in range(4):
            x = ACC + a * 4 + r
            e(f"v_add_f32 v{x}, v{x}, v{WF+r}")
        e(f"v_cvt_pk_bf16_f32 v{WF + 8 + 2*a}, v{ACC+a*4}, v{ACC+a*4+1}", f"v_cvt_pk_bf16_f32 v{WF + 9 + 2*a}, v{ACC+a*4+2}, v{ACC+a*4+3}")
    if which == 3:
        e("s_lshl_b32 s3, s70, 2", "s_add_u32 s3, s3, s44", "s_mul_i32 s3, s3, 14", "s_lshl_b32 s38, s71, 1", "s_add_u32 s3, s3, s38", "s_lshl_b32 s38, s3, 10")
        for t in range(2): e(f"buffer_store_dwordx4 {vr(WF + 8 + 4*t, 4)}, v{vL16}, s[{sO}:{sO+3}], s38 offen offset:{1024*t} sc1")
        for i in range(8): e(f"v_accvgpr_write_b32 a{RES+i}, v{WF+8+i}")
        e("s_and_b32 s3, s70, 1", "s_mul_i32 s3, s3, 7", "s_add_u32 s3, s3, s71", "s_lshl_b32 s69, s72, 4", "s_add_u32 s69, s69, s3", "s_lshl_b32 s69, s69, 7", f"s_add_u32 s69, s69, {768*128}")
    else:
        e("v_and_b32 v13, 15, v0", "v_bfe_u32 v14, v0, 4, 2", "s_lshl_b32 s3, s70, 6", "s_lshl_b32 s38, s44, 4", "s_add_u32 s3, s3, s38")
        e("v_add_u32 v13, s3, v13", "v_mul_u32_u24 v13, 896, v13", "v_lshl_add_u32 v13, v14, 3, v13", "s_lshl_b32 s38, s71, 7")
        for a in range(4): e(f"buffer_store_dwordx2 {vr(WF + 8 + 2*a, 2)}, v13, s[{sO}:{sO+3}], s38 offen offset:{32*a}{opt.get('ost', '')}")

def gen_k4(k, opt=None):
    opt = opt or {}
    e = k.e
    vL16, vW, vDW = 1, 2, 16
    Y, XN, EP = 32, 112, 224
    sG, sU, sX, sO = 8, 16, 20, 24
    e("s_load_dwordx4 s[32:35], s[0:1], 56")
    e("v_and_b32 v22, 63, v0", "v_and_b32 v24, 15, v22", "v_lshrrev_b32 v25, 4, v22")
    k.srd(sX, 14, 128 * 14 * 1024, add=WS_H)
    k.srd(sO, 14, 128 * 56 * 1024, add=WS_HH)
    e("s_lshl_b32 s3, s76, 3", "s_lshl_b32 s36, s44, 1", "s_add_u32 s36, s36, s3")
    e("s_lshl_b32 s3, s44, 3", "v_add_u32 v26, s3, v25", "v_mul_u32_u24 v26, 3584, v26")
    e("v_lshlrev_b32 v27, 1, v25", "v_xor_b32 v27, v27, v24", "v_xor_b32 v28, 8, v27")
    e(f"v_lshl_add_u32 v{vDW}, v27, 4, v26", "v_lshl_add_u32 v28, v28, 4, v26", f"v_add_u32 v{vDW+1}, {4*3584 - 1024}, v28")
    e("s_lshl_b32 s38, s44, 11", "s_mov_b32 s42, 0", "s_lshl_b32 s3, s73, 8")
    e("s_waitcnt lgkmcnt(0)")
    for S, P in ((sG, 32), (sU, 34)):
        e(f"s_add_u32 s{S}, s{P}, s3", f"s_addc_u32 s{S+1}, s{P+1}, 0", f"s_sub_u32 s{S+2}, {448*3584}, s3", f"s_mov_b32 s{S+3}, 0x20000")
    def dma(slot):
        l = []
        for mat, S in enumerate((sG, sU)):
            l.append(f"s_add_u32 m0, s38, {slot*16384 + mat*8192}")
            l += [f"buffer_load_dwordx4 v{vDW+i}, s[{S}:{S+3}], s42 offen offset:{1024*i} lds" for i in range(2)]
        l.append(f"s_add_u32 s42, s42, {32*3584}")
        return l
    def dmas(m):
        d = dma(m); return [d[0], "s_nop 0", d[1], d[2], d[3], "s_nop 0", *d[4:]]
    e("s_barrier")
    NP = opt.get('np', 10)
    NE = opt.get('ne', 4)
    for m in range(NE): e(*dmas(m))
    pub(k, 4 * NE)
    e("s_lshl_b32 s39, s76, 11", f"s_add_u32 s39, s39, {768*128}")
    for m in range(NE, NP):
        if m == NP - 3: e(*probe(k, 39, 14))
        e(*dmas(m))
    e("v_lshrrev_b32 v26, 2, v24", "v_lshl_add_u32 v26, v25, 2, v26", "v_and_b32 v27, 3, v24", "v_lshlrev_b32 v27, 3, v27", "v_lshl_add_u32 v27, v26, 8, v27")
    e("v_and_b32 v28, 7, v26")
    for a in range(8): e(f"v_xor_b32 v29, {a}, v28", f"v_lshl_add_u32 v{vW+a}, v29, 5, v27")
    wait_flags(k, 39, 14, "L4_s", "s_waitcnt vmcnt(12)")
    k.st('p4go')
    e("s_mul_i32 s37, s36, 14336")
    for c in range(2):
        for m in range(14):
            if m % 4 == 0 and (m or c): e(f"s_add_u32 s37, s37, {4096 if m else 2048}")
            e(f"buffer_load_dwordx4 {vr(XN + (m*2+c)*4, 4)}, v{vL16}, s[{sX}:{sX+3}], s37 offen offset:{1024*(m%4)} sc1")
    for m in range(NP, 10): e(*dmas(m))
    e(f"s_waitcnt vmcnt({4*(10-NP)})")
    k.st('p4ln')
    e(*ln_ops(XN, 1.0))
    e("s_waitcnt vmcnt(0)", "s_barrier")
    NR, LA = 16, 6
    def rdQ(f, jj):
        m, j = divmod(f, 16)
        off = ((m if m < 10 else m - 10) * 16384) & 0xffff
        a, mat = divmod(j, 2)
        return f"ds_read_b64_tr_b16 {vr(Y + 4*(f % NR) + 2*jj, 2)}, v{vW + a} offset:{off + mat*8192 + jj*4096}"
    mf = []; fill = {}
    def add(g, *t): fill.setdefault(g, []).extend(t)
    for f in range(LA): add(-1, rdQ(f, 0), rdQ(f, 1))
    NF = 14 * 16
    for f in range(NF):
        m, j = divmod(f, 16)
        for ci in range(2):
            c = ci if j % 2 == 0 else 1 - ci
            t = ar((j * 2 + c) * 4, 4)
            mf.append(f"v_mfma_f32_16x16x32_bf16 {t}, {vr(Y + 4*(f % NR), 4)}, {vr(XN + (m*2+c)*4, 4)}, {t if m else 0}")
        g0 = 2 * f; nxt = f + LA
        if f % 2 == 0:
            rem = max(0, min(NF, f + LA) - (f + 2))
            add(g0 - 1, f"s_waitcnt lgkmcnt({2 * rem})")
        if nxt < NF:
            mn, jn = divmod(nxt, 16)
            if jn == 0 and mn in (4, 8):
                add(g0 - 1, *[f"v_add_u32 v{vW+a}, 0x10000, v{vW+a}" for a in range(8)])
            if jn == 0 and mn == 10:
                add(g0 - 1, *[f"v_subrev_u32 v{vW+a}, 0x20000, v{vW+a}" for a in range(8)])
                add(g0 - 1, "s_waitcnt vmcnt(0)", "s_barrier")
            add(g0, rdQ(nxt, 0)); add(g0 + 1, rdQ(nxt, 1))
        if f == 4 * 16 + 2: add(g0, "s_barrier")
        if 4 * 16 + 4 <= f < 4 * 16 + 4 + 28:
            n = f - (4 * 16 + 4)
            add(g0 + (n & 1), dma(n // 7)[n % 7])
    e(*weave(mf, fill))
    k.st('p4end')
    e("s_mul_i32 s37, s36, 57344", "s_lshl_b32 s3, s73, 12", "s_add_u32 s37, s37, s3", "s_nop 4")
    idx = 0
    for c in range(2):
        for t4 in range(4):
            t = EP + 0
            for h in range(2):
                a = 2 * t4 + h
                for r in range(4):
                    e(f"v_accvgpr_read_b32 v{t + 4*h + r}, a{((a*2 + 0) * 2 + c) * 4 + r}", f"v_accvgpr_read_b32 v{t + 8 + 4*h + r}, a{((a*2 + 1) * 2 + c) * 4 + r}")
            for i in range(8): e(f"v_mul_f32 v{t+i}, v{t+i}, v{t+8+i}")
            o = EP + 16 + 4 * (idx & 1); idx += 1
            for q in range(4): e(f"v_cvt_pk_bf16_f32 v{o + q}, v{t + 2*q}, v{t + 2*q + 1}")
            e(f"buffer_store_dwordx4 {vr(o, 4)}, v{vL16}, s[{sO}:{sO+3}], s37 offen offset:{1024 * t4} sc1")
        if c == 0: e("s_add_u32 s37, s37, 57344")
    e("s_lshl_b32 s69, s76, 4", "s_add_u32 s69, s69, s73", "s_lshl_b32 s69, s69, 7", f"s_add_u32 s69, s69, {1024*128}")
```

```python
import gen, k1, k2, k345, sys
from k1 import MB
OUT = 'sequential_preLN__compressed_kv_cla__glu_gated_bilinear__prompt.s'
NAME = 'sequential_preLN__compressed_kv_cla__glu_gated_bilinear__prompt_kernel'
def full(prof=False, stamps=None, **kw):
    o = lambda n: dict(dict(st=' sc1'), **kw.get(n, {}))
    k = k1.gen_k1(dict(o('k1'), prof=prof, name=NAME, early=lambda k: k2.gen_k2(k, o('k2'), early=True), stamps=stamps or ['start', 'epi', 'attn', 'aend', 'p3go', 'p3end', 'p4go']))
    k2.gen_k2(k, o('k2'))
    k345.gen_proj(k, 3, o('k3')); k345.gen_k4(k, o('k4')); k345.gen_proj(k, 5, o('k5'))
    k.e("s_cmp_eq_u32 s2, 0", "s_cbranch_scc0 L_fin", "v_mov_b32 v2, 0x40000", "v_mov_b32 v3, s7", "buffer_store_dword v3, v2, s[28:31], 0 offen")
    k.label("L_fin")
    k.dump_stamps(len(k.stamps) + 1, 14, 200 * MB)
    k.label("L_done")
    k.e("s_endpgm")
    k.e(*k.rare)
    return [(k, 512, 256, 163840, 256, 256)]
if __name__ == '__main__':
    gen.build(full(), 'full.s')
    gen.build(full(True), 'fullp.s')
    gen.build(full(True, ['start', 'p3end', 'p4go', 'p4ln', 'p4end', 'p5go', 'p5end']), 'fullq.s')
    gen.build(full(k2={'thr': 4.0}), 'fullt.s')
    gen.build(full(), OUT, plain=True)
```

```python
import re

def vr(b, n=1, p='v'):
    return f"{p}{b}" if n == 1 else f"{p}[{b}:{b+n-1}]"
def ar(b, n=1): return vr(b, n, 'a')
def sr(b, n=1): return vr(b, n, 's')

_REG = re.compile(r'^(-|abs\(|\|)?([vas])(?:(\d+)|\[(\d+):(\d+)\])\)?\|?$')
def regs_of(op):
    op = op.strip()
    if op in ('vcc', 'vcc_lo', 'vcc_hi'): return {('s', 'vcc')}
    if op == 'exec': return {('s', 'exec')}
    if op == 'm0': return {('s', 'm0')}
    m = _REG.match(op)
    if not m: return set()
    k = m.group(2)
    if m.group(3) is not None: return {(k, int(m.group(3)))}
    return {(k, i) for i in range(int(m.group(4)), int(m.group(5)) + 1)}

TRANS = ('v_exp_f32', 'v_log_f32', 'v_rcp_f32', 'v_rsq_f32', 'v_sqrt_f32', 'v_sin_f32', 'v_cos_f32')

class Ins:
    def __init__(self, text):
        self.text = text
        t = text.split(';')[0].strip()
        self.label = t.endswith(':')
        parts = t.split(None, 1)
        self.op = parts[0] if parts else ''
        rest = parts[1] if len(parts) > 1 else ''
        ops = [o.strip() for o in rest.split(',')] if rest else []
        mods = ''
        if ops:
            sp = ops[-1].split(None, 1)
            ops[-1] = sp[0]
            mods = sp[1] if len(sp) > 1 else ''
        self.ops, self.mods = ops, mods
        op = self.op
        self.w, self.r = set(), set()
        self.kind = 'other'
        self.states = 1
        self.srcc = set(); self.srcab = set(); self.passes = 0
        R = lambda i: regs_of(ops[i]) if i < len(ops) else set()
        if self.label or op.startswith('.') or op == '':
            self.kind = 'none'; self.states = 0
        elif op == 's_nop':
            self.kind = 'salu'; self.states = int(ops[0], 0) + 1
        elif op.startswith('v_mfma'):
            self.kind = 'mfma'
            self.w = R(0); self.srcab = R(1) | R(2); self.srcc = R(3); self.r = self.srcab | self.srcc
            self.passes = 8 if '32x32' in op else 4
        elif op.startswith('ds_read') or op.startswith('ds_bpermute') or op.startswith('ds_swizzle'):
            self.kind = 'ds'; self.w = R(0)
            for i in range(1, len(ops)): self.r |= R(i)
        elif op.startswith('ds_'):
            self.kind = 'ds'
            for i in range(len(ops)): self.r |= R(i)
        elif op.startswith('buffer_load') or op.startswith('global_load'):
            self.kind = 'vmem'
            if ' lds' in ' ' + mods or 'load_lds' in op:
                for i in range(len(ops)): self.r |= R(i)
                self.r |= {('s', 'm0')}; self.dma = True
            else:
                self.w = R(0)
                for i in range(1, len(ops)): self.r |= R(i)
        elif op.startswith('buffer_store') or op.startswith('global_store') or op.startswith('buffer_atomic') or op.startswith('global_atomic'):
            self.kind = 'vmem'
            for i in range(len(ops)): self.r |= R(i)
            self.store_data = R(0) if op.startswith('buffer') else R(1)
            self.wide = ('x3' in op or 'x4' in op)
        elif op.startswith('buffer_') :
            self.kind = 'vmem'
        elif op.startswith('v_'):
            self.kind = 'valu'
            self.w = R(0)
            start = 1
            if op.startswith('v_cmp'):
                pass
            if op.startswith(('v_add_co', 'v_sub_co', 'v_addc_co', 'v_subb_co', 'v_div_scale', 'v_mad_u64')):
                self.w |= R(1); start = 2
            for i in range(start, len(ops)): self.r |= R(i)
            if op.startswith(('v_fmac', 'v_dot2c', 'v_pk_fmac')): self.r |= R(0)
            if op.startswith('v_permlane') and 'swap' in op:
                self.r |= R(0); self.w |= R(1)
            if op.startswith('v_cndmask') and len(ops) == 3: self.r |= {('s', 'vcc')}
            if op.startswith('v_cmpx'): self.w |= {('s', 'exec')}
        elif op.startswith('s_'):
            self.kind = 'salu'
            if op.startswith(('s_cmp', 's_cbranch', 's_branch', 's_waitcnt', 's_barrier', 's_endpgm', 's_setprio', 's_sleep', 's_bitcmp')):
                for i in range(len(ops)): self.r |= R(i)
            else:
                self.w = R(0)
                for i in range(1, len(ops)): self.r |= R(i)
        self.trans = op.replace('_e32', '').replace('_e64', '') in TRANS
        self.dpp = 'row_' in mods or 'quad_perm' in mods or '_dpp' in op
        self.dot = op.startswith('v_dot')

def vec(s): return {x for x in s if x[0] in 'va'}
def sca(s): return {x for x in s if x[0] == 's'}

def need(p, c):
    n = 0
    if p.kind == 'valu':
        pw_v, pw_s = vec(p.w), sca(p.w)
        if c.kind == 'mfma' and pw_v & c.r: n = max(n, 2)
        if c.kind == 'vmem' and pw_s & c.r: n = max(n, 5)
        if c.kind == 'valu':
            if pw_s & c.r: n = max(n, 4 if c.op.startswith(('v_readlane', 'v_writelane', 'v_div_fmas')) else 2)
            if c.op.startswith(('v_readlane', 'v_readfirstlane')) and pw_v & c.r: n = max(n, 1)
            if c.op.startswith('v_permlane') and pw_v & c.r: n = max(n, 2)
            if c.dpp and pw_v & c.r: n = max(n, 2)
            if p.trans and not c.trans and pw_v & c.r: n = max(n, 1)
            if p.dot and (pw_v & (c.r | c.w)) and not (c.op == p.op and not (pw_v & (regs_of(c.ops[1]) | regs_of(c.ops[2]))) ): n = max(n, 3)
        if ('s', 'exec') in p.w and c.kind in ('mfma',): n = max(n, 4)
        if p.trans and c.kind in ('mfma', 'vmem', 'ds') and pw_v & c.r: n = max(n, 2)
        if p.dot and c.kind in ('mfma', 'vmem', 'ds') and pw_v & c.r: n = max(n, 3)
    if p.kind == 'salu' and ('s', 'm0') in p.w and getattr(c, 'dma', False): n = max(n, 1)
    if p.kind == 'mfma':
        k = {4: 8, 8: 12}[p.passes]
        if c.kind == 'mfma':
            if p.w & c.srcab: n = max(n, k)
            if p.w & c.srcc and not (p.w == c.srcc and p.passes == c.passes): n = max(n, k - 2)
            if p.w & c.w and not (p.w == c.srcc) : n = max(n, k - 2)
        elif c.kind in ('valu', 'vmem', 'ds'):
            if p.w & (c.r | c.w): n = max(n, k)
            if c.kind == 'valu' and p.srcc & c.w: n = max(n, {4: 3, 8: 7}[p.passes])
    if p.kind == 'vmem' and getattr(p, 'wide', False) and c.kind == 'valu' and p.store_data & c.w: n = max(n, 2)
    if p.kind == 'vmem' and getattr(p, 'wide', False) and c.kind in ('ds', 'vmem', 'mfma') and p.store_data & c.w: n = max(n, 1)
    return n

def check_hazards(lines, name=''):
    ins = [Ins(l) for l in lines]
    probs = []
    for j, c in enumerate(ins):
        if c.kind == 'none': continue
        d = 0
        for i in range(j - 1, max(-1, j - 40), -1):
            p = ins[i]
            if p.op in ('s_branch', 's_endpgm'): break
            if p.kind != 'none':
                n = need(p, c)
                if n > d:
                    probs.append(f"{name}: line {j}: [{p.text.strip()}] -> [{c.text.strip()}] needs {n} has {d}")
            d += p.states
            if d >= 20: break
    return probs

class K:
    def __init__(self, name):
        self.name = name; self.L = []
    def e(self, *txt):
        for t in txt:
            for l in t.split('\n'):
                l = l.strip()
                if l: self.L.append(l if l.endswith(':') else '    ' + l)
    def label(self, s): self.L.append(f"{s}:")
    def srd(self, d, base, nbytes, add=None):
        if add:
            self.e(f"s_add_u32 s{d}, s{base}, {hex(add)}", f"s_addc_u32 s{d+1}, s{base+1}, 0")
        else:
            self.e(f"s_mov_b32 s{d}, s{base}", f"s_mov_b32 s{d+1}, s{base+1}")
        self.e(f"s_mov_b32 s{d+2}, {hex(nbytes)}", f"s_mov_b32 s{d+3}, 0x20000")
    def code_pf(self, a, b, sreg, vaddr, vdst, nloads, setup=True):
        self._pf = getattr(self, '_pf', 0) + 1
        l = [f"s_getpc_b64 s[{sreg}:{sreg+1}]", f"s_add_u32 s{sreg}, s{sreg}, {a}@rel32@lo+4", f"s_addc_u32 s{sreg+1}, s{sreg+1}, {a}@rel32@hi+12",
             f"s_mov_b32 s{sreg+2}, {b}-{a}", f"s_mov_b32 s{sreg+3}, 0x20000"]
        if setup: l.append(f"v_lshlrev_b32 v{vaddr}, 6, v0")
        for i in range(nloads):
            if i: l.append(f"v_add_u32 v{vaddr}, 0x4000, v{vaddr}")
            l.append(f"buffer_load_dword v{vdst}, v{vaddr}, s[{sreg}:{sreg+3}], 0 offen")
        return l
    def st(self, name):
        l = getattr(self, 'stamps', [])
        if name in l: self.stamp(l.index(name))
    def stamp(self, i):
        if getattr(self, 'prof', False):
            self.e(f"s_memtime s[{80+2*(i%2)}:{81+2*(i%2)}]", f"s_memrealtime s[{84}:{85}]", "s_waitcnt lgkmcnt(0)", f"s_mov_b32 s{86+2*i}, s{80+2*(i%2)}", f"s_mov_b32 s{87+2*i}, s84")
    def dump_stamps(self, n, wsptr, off):
        if not getattr(self, 'prof', False): return
        self.e("s_waitcnt vmcnt(0)")
        self.stamp(n - 1)
        d = getattr(self, 'dbg', None)
        if d:
            kidx, slot, idxs = d
            self.e("s_load_dwordx2 s[4:5], s[0:1], 88", "s_waitcnt lgkmcnt(0)", f"s_add_u32 s4, s4, {512*(4-kidx)}", "s_addc_u32 s5, s5, 0", "s_mov_b32 s6, 256", "s_mov_b32 s7, 0x20000")
            self.e("s_lshl_b32 s3, s2, 12", "v_lshlrev_b32 v2, 12, v0", "v_add_u32 v2, s3, v2")
            for j, i in enumerate(idxs):
                self.e(f"v_mov_b32 v5, s{87+2*(i % n)}", f"buffer_store_dword v5, v2, s[4:7], 0 offen offset:{4*(slot+j)}", "s_nop 1")
            self.e("s_waitcnt vmcnt(0)")
            return
        self.e(f"s_add_u32 s4, s{wsptr}, {hex(off)}", f"s_addc_u32 s5, s{wsptr+1}, 0", "s_mov_b32 s6, 0x100000", "s_mov_b32 s7, 0x20000")
        self.e("s_lshl_b32 s3, s2, 8", "v_mov_b32 v2, s3", "v_lshrrev_b32 v3, 6, v0", "v_lshl_add_u32 v2, v3, 6, v2")
        for i in range(n):
            self.e(f"v_mov_b32 v4, s{86+2*i}", f"v_mov_b32 v5, s{87+2*i}", f"buffer_store_dwordx2 v[4:5], v2, s[4:7], 0 offen offset:{8*i}", "s_nop 1")
        self.e("s_waitcnt vmcnt(0)")
    def text(self): return f".p2align 8\n{self.name}:\n" + "\n".join(self.L) + f"\n{self.name}_end:\n"
    def desc(self, vgpr, accum, sgpr=102):
        return (f".p2align 6\n.amdhsa_kernel {self.name}\n  .amdhsa_next_free_vgpr {vgpr}\n  .amdhsa_next_free_sgpr {sgpr}\n"
                f"  .amdhsa_accum_offset {accum}\n  .amdhsa_group_segment_fixed_size 0\n  .amdhsa_kernarg_size 104\n"
                f"  .amdhsa_float_denorm_mode_32 3\n"
                f"  .amdhsa_user_sgpr_count 2\n  .amdhsa_user_sgpr_kernarg_segment_ptr 1\n  .amdhsa_system_sgpr_workgroup_id_x 1\n.end_amdhsa_kernel\n")

def weave(mf, fill):
    out = list(fill.get(-1, []))
    for i, m in enumerate(mf):
        out.append(m)
        out.extend(fill.get(i, []))
    return out


class VQ:
    def __init__(self, seed=()): self.q = list(seed)
    def copy(self): return VQ(self.q)
    def run(self, lines):
        out = []
        for x in lines:
            t = x.strip()
            if t.startswith('VW '):
                body, _, extra = t[3:].partition('|')
                tags = body.split()
                last = max(i for i, g in enumerate(self.q) if g in tags)
                for g in tags: assert g in self.q, g
                out.append(f"s_waitcnt vmcnt({min(63, len(self.q) - 1 - last)}) {extra.strip()}".strip())
                continue
            if t.startswith('buffer_') or t.startswith('global_'):
                self.q.append(t.split(';#')[1].strip() if ';#' in t else '-')
            out.append(x.split(';#')[0].rstrip())
        return out
def tag(l, t): return [x + f" ;#{t}" if x.startswith('buffer_') else x for x in l]
```

```python
from asmlib import *
import re

MB = 1 << 20
WS_K, WS_V, WS_Q, WS_C = 0, 16 * MB, 32 * MB, 48 * MB
WS_PART = 64 * MB
WS_H = 96 * MB
WS_HH = 104 * MB
WS_X = 112 * MB
WS_FLAG = 120 * MB
WS_SIZE = 256 * MB
LOG2E = 1.4426950408889634

def f2u(x):
    import struct
    return struct.unpack('<I', struct.pack('<f', x))[0]

def ln_ops(XN, scale):
    l = []
    e = lambda *a: l.extend(a)
    e("v_mov_b32 v22, 0x3f803f80")
    e("v_mov_b32 v24, 0", "v_mov_b32 v25, 0", "v_mov_b32 v26, 0", "v_mov_b32 v27, 0")
    for m in range(14):
        for r in range(4):
            for c in range(2):
                x = XN + (m * 2 + c) * 4 + r
                e(f"v_dot2c_f32_bf16 v{24+c}, v{x}, v22", f"v_dot2c_f32_bf16 v{26+c}, v{x}, v{x}")
    e("s_nop 2")
    for sw in ("v_permlane32_swap_b32", "v_permlane16_swap_b32"):
        for R in (24, 25, 26, 27): e(f"v_mov_b32 v{R+4}, v{R}")
        e("s_nop 1")
        for R in (24, 25, 26, 27): e(f"{sw} v{R}, v{R+4}")
        for R in (24, 25, 26, 27): e(f"v_add_f32 v{R}, v{R}, v{R+4}")
    e(f"s_mov_b32 s3, {hex(f2u(1.0/448))}", f"s_mov_b32 s62, {hex(f2u(1e-5))}", f"s_mov_b32 s63, {hex(f2u(scale))}")
    for c in range(2):
        e(f"v_mul_f32 v{24+c}, s3, v{24+c}", f"v_mul_f32 v{26+c}, s3, v{26+c}")
        e(f"v_fma_f32 v{26+c}, -v{24+c}, v{24+c}, v{26+c}", f"v_max_f32 v{26+c}, 0, v{26+c}", f"v_add_f32 v{26+c}, s62, v{26+c}")
        e(f"v_rsq_f32 v{26+c}, v{26+c}", "s_nop 0", f"v_mul_f32 v{26+c}, s63, v{26+c}", f"v_mul_f32 v{24+c}, -v{24+c}, v{26+c}")
    e("s_mov_b32 s3, 0xffff0000")
    for m in range(14):
        for c in range(2):
            for r in range(4):
                x = XN + (m * 2 + c) * 4 + r
                t = 28 + 2 * (r & 1)
                e(f"v_lshlrev_b32 v{t}, 16, v{x}", f"v_and_b32 v{t+1}, s3, v{x}",
                  f"v_fma_f32 v{t}, v{t}, v{26+c}, v{24+c}", f"v_fma_f32 v{t+1}, v{t+1}, v{26+c}, v{24+c}",
                  f"v_cvt_pk_bf16_f32 v{x}, v{t}, v{t+1}")
    return l

def merge_streams(a, b):
    out = []; n = len(b); step = len(a) / (n + 0.0)
    j = 0
    for i, x in enumerate(a):
        while j < n and i >= j * step:
            out.extend(b[j]); j += 1
        out.append(x)
    while j < n: out.extend(b[j]); j += 1
    return out

def gen_k1(opt=None):
    opt = opt or {}
    ST = opt.get('st', '')
    k = K(opt.get('name', 'k1_kernel'))
    e = k.e
    END = 'L_done'
    k.prof = opt.get('prof', False); k.dbg = opt.get('dbgst')
    k.stamps = opt.get('stamps', ['start', 'epi', 'qend', 'kvdone', 'kvready', 'attn', 'aend'])
    vLane16, vW, vC, vDC, vDW, vX = 1, 2, 10, 12, 16, 20
    Y, X, XN, EP = 32, 96, 112, 224
    sC, sW, sX, sO, sP = 16, 20, 44, 72, 68
    e("s_cmp_ge_u32 s2, 256", f"s_cbranch_scc1 {END}")
    k.st('start')
    e("s_load_dwordx8 s[4:11], s[0:1], 0", "s_load_dwordx2 s[12:13], s[0:1], 32", "s_load_dwordx2 s[14:15], s[0:1], 96")
    e("v_and_b32 v22, 63, v0", "v_lshrrev_b32 v23, 6, v0", "v_lshlrev_b32 v1, 4, v22")
    e("v_readfirstlane_b32 s32, v23")
    e("v_and_b32 v24, 15, v22", "v_lshrrev_b32 v25, 4, v22")
    e("s_and_b32 s3, s2, 7", "s_lshr_b32 s33, s2, 3")
    e("s_and_b32 s36, s33, 7")
    e("s_lshr_b32 s34, s33, 3")
    e("s_and_b32 s35, s34, 1", "s_lshl_b32 s3, s3, 1", "s_add_u32 s35, s35, s3")
    e("s_lshr_b32 s37, s34, 1")
    e("s_and_b32 s38, s33, 1", "s_add_u32 s38, s38, s3")
    e("s_lshr_b32 s39, s33, 2", "s_sub_u32 s40, 15, s39", "s_bitcmp1_b32 s33, 1", "s_cselect_b32 s39, s39, s40")
    e("s_and_b32 s33, s32, 1", "s_lshr_b32 s34, s32, 1")
    e("v_lshrrev_b32 v26, 3, v22", "s_lshl_b32 s40, s32, 6", "v_add_u32 v26, s40, v26", "v_lshlrev_b32 v26, 11, v26")
    e("v_and_b32 v27, 7, v22", "v_xor_b32 v27, v27, v25", "v_xor_b32 v28, 4, v27")
    e("v_lshl_add_u32 v27, v27, 4, v26", "v_lshl_add_u32 v28, v28, 4, v26")
    for i in range(4):
        e(f"v_add_u32 v{vDC+i}, {i*16384 - 1024*i}, v{27 + (i&1)}")
    e("v_lshrrev_b32 v26, 5, v22", "v_and_b32 v27, 31, v22")
    e("s_lshl_b32 s40, s33, 3")
    e("v_lshlrev_b32 v28, 1, v26", "v_xor_b32 v27, v27, v28", "v_xor_b32 v27, s40, v27")
    e("s_lshl_b32 s40, s32, 3", "v_add_u32 v26, s40, v26", "v_lshlrev_b32 v26, 13, v26")
    e("v_xor_b32 v28, 4, v27")
    e("v_lshl_add_u32 v27, v27, 4, v26", "v_lshl_add_u32 v28, v28, 4, v26")
    for i in range(4):
        e(f"v_add_u32 v{vDW+i}, {i*16384 - 1024*i}, v{27 + (i&1)}")
    e("s_lshl_b32 s24, s32, 12", "s_add_u32 s25, s24, 16384", "s_add_u32 s26, s24, 32768", "s_add_u32 s27, s24, 49152")
    e("s_lshl_b32 s53, s32, 13", "s_add_u32 s53, s53, 65536")
    e("s_lshl_b32 s40, s36, 19", "s_lshl_b32 s42, s35, 9", "s_cmp_eq_u32 s37, 1")
    e("s_waitcnt lgkmcnt(0)")
    e("s_cselect_b32 s48, s12, s10", "s_cselect_b32 s49, s13, s11")
    e(f"s_add_u32 s{sC}, s6, s40", f"s_addc_u32 s{sC+1}, s7, 0", f"s_mov_b32 s{sC+2}, 0x80000", f"s_mov_b32 s{sC+3}, 0x20000")
    e(f"s_add_u32 s{sW}, s48, s42", f"s_addc_u32 s{sW+1}, s49, 0", f"s_sub_u32 s{sW+2}, {1024*8192}, s42", f"s_mov_b32 s{sW+3}, 0x20000")
    e("s_mov_b32 s40, 0", "s_mov_b32 s41, 65536", "s_mov_b32 s42, 0")
    def dmaC(grp):
        return [f"s_add_u32 m0, s53, {4096*grp}" if grp else "s_mov_b32 m0, s53"] + [
            f"buffer_load_dwordx4 v{vDC+i}, s[{sC}:{sC+3}], s{40+grp} offen offset:{1024*i} lds" for i in range(4)]
    def dmaW(slot):
        return [f"s_mov_b32 m0, s{24+slot}"] + [
            f"buffer_load_dwordx4 v{vDW+i}, s[{sW}:{sW+3}], s42 offen offset:{1024*i} lds" for i in range(4)]
    def seq(l): e(l[0], "s_nop 0", *l[1:])
    def pro(n):
        seq(dmaC(n & 1))
        if n & 1:
            e("s_add_u32 s40, s40, 128", "s_add_u32 s41, s41, 128", "s_add_u32 s53, s53, 32768")
        seq(dmaW(n))
        e(f"s_add_u32 s42, s42, {32*8192}")
    XR = 232
    k.srd(28, 14, 0x40000 + 128, add=WS_FLAG)
    e("v_mov_b32 v29, 0x40000", "buffer_load_dword v240, v29, s[28:31], 0 offen")
    e("s_lshl_b32 s3, s2, 3", "s_lshl_b32 s43, s32, 1", "s_add_u32 s3, s3, s43", "s_mul_i32 s3, s3, 896")
    e(f"s_add_u32 s{sX}, s4, s3", f"s_addc_u32 s{sX+1}, s5, 0", f"s_movk_i32 s{sX+2}, 896", f"s_mov_b32 s{sX+3}, 0x20000")
    e(f"buffer_load_dwordx4 {vr(XR,4)}, v{vLane16}, s[{sX}:{sX+3}], 0 offen")
    e(f"s_add_u32 s{sX}, s{sX}, 896", f"s_addc_u32 s{sX+1}, s{sX+1}, 0")
    e(f"buffer_load_dwordx4 {vr(XR+4,4)}, v{vLane16}, s[{sX}:{sX+3}], 0 offen")
    pro(0); pro(1)
    if opt.get('cpf', 1): e(*k.code_pf(k.name, 'L1_epi', 64, 30, 224, 2))
    e("s_lshl_b32 s3, s38, 9", "s_add_u32 s56, s8, s3", "s_addc_u32 s57, s9, 0", f"s_sub_u32 s58, {448*8192}, s3")
    e("v_lshrrev_b32 v26, 2, v24", "v_lshl_add_u32 v27, v25, 3, v26", "v_lshlrev_b32 v27, 9, v27")
    e("v_and_b32 v28, 3, v24", "v_lshl_add_u32 v27, v28, 3, v27")
    e("s_lshl_b32 s3, s34, 8", "v_add_u32 v27, s3, v27")
    e("v_and_b32 v28, 1, v25", "v_lshl_add_u32 v28, v28, 2, v26")
    for a in range(8):
        e(f"v_xor_b32 v29, {a}, v28", f"v_lshl_add_u32 v{vW+a}, v29, 5, v27")
    e("s_lshl_b32 s3, s33, 7", "v_add_u32 v26, s3, v24", "v_lshlrev_b32 v26, 7, v26", "v_add_u32 v26, 65536, v26")
    e("v_lshrrev_b32 v27, 1, v24", "v_xor_b32 v27, v27, v25", "v_xor_b32 v28, 4, v27")
    e(f"v_lshl_add_u32 v{vC}, v27, 4, v26", f"v_lshl_add_u32 v{vC+1}, v28, 4, v26")
    PS = opt.get('ps', 4)
    def pfdesc(S, bufs, CH, t=59):
        e(f"s_mov_b32 s{S}, s{bufs[0][0]}", f"s_mov_b32 s{S+1}, s{bufs[0][0]+1}", f"s_mov_b32 s{S+2}, {bufs[0][1]}", f"s_mov_b32 s{S+3}, 0x20000", f"s_mov_b32 s{t}, 0")
        first = -(-bufs[0][1] // CH)
        for ptr, size in bufs[1:]:
            e(f"s_cmp_ge_u32 s2, {first}", f"s_cselect_b32 s{S}, s{ptr}, s{S}", f"s_cselect_b32 s{S+1}, s{ptr+1}, s{S+1}",
              f"s_cselect_b32 s{S+2}, {size}, s{S+2}", f"s_cselect_b32 s{t}, {first}, s{t}")
            first += -(-size // CH)
        assert first <= 256, first
        e(f"s_sub_u32 s{t}, s2, s{t}", f"s_mul_i32 s{t}, s{t}, {CH}")
        e(f"s_add_u32 s{S}, s{S}, s{t}", f"s_addc_u32 s{S+1}, s{S+1}, 0", f"s_sub_u32 s{S+2}, s{S+2}, s{t}", f"s_cselect_b32 s{S+2}, 0, s{S+2}",
          f"s_min_u32 s{S+2}, s{S+2}, {CH}")
    pfdesc(sP, [(8, 448*8192)], 16384)
    k.tailpf0 = lambda: e("s_load_dwordx2 s[52:53], s[0:1], 40", "s_load_dwordx4 s[56:59], s[0:1], 56", "s_load_dwordx2 s[54:55], s[0:1], 72")
    k.tailpf = lambda: (e("s_waitcnt lgkmcnt(0)"), pfdesc(64, [(52, 4096*896), (56, 448*3584), (58, 448*3584), (54, 1792*896)], 34816, 60))
    e(f"v_lshlrev_b32 v23, {PS}, v0", "s_mov_b32 s59, 0")
    k.srd(sO, 14, WS_C if not opt.get('oob') else 0)
    pfi = [f"buffer_load_dword v{EP}, v23, s[{sP}:{sP+3}], s59 offen", f"s_add_u32 s59, s59, {256 << PS}"]
    def rdW(a, jj, slot, p):
        d = Y + 32 * p + 4 * a + 2 * jj
        return f"ds_read_b64_tr_b16 {vr(d,2)}, v{vW+a} offset:{slot*16384 + jj*2048}"
    def rdC(b, sp):
        return f"ds_read_b128 {vr(X + 4*(b&3),4)}, v{vC+sp} offset:{b*2048}"
    e("s_lshr_b32 s3, s2, 1", "s_mul_i32 s3, s3, 14336", f"s_add_u32 s3, s3, {hex(WS_X)}")
    e(f"s_add_u32 s{sX}, s14, s3", f"s_addc_u32 s{sX+1}, s15, 0", f"s_movk_i32 s{sX+2}, 14336")
    e("s_lshl_b32 s3, s32, 5", f"s_add_u32 s3, s3, {128*1024}", "v_lshlrev_b32 v20, 7, v22", "v_add_u32 v20, s3, v20")
    e("v_lshlrev_b32 v241, 4, v0", f"v_add_u32 v241, {128*1024}, v241")
    e("v_lshrrev_b32 v242, 3, v0", "v_and_b32 v243, 7, v0", "v_lshlrev_b32 v243, 4, v243", "v_lshl_add_u32 v242, v242, 8, v243")
    e("s_and_b32 s48, s2, 1", "s_lshl_b32 s48, s48, 7", "v_add_u32 v243, 0x2000, v242")
    for i in range(256): e(f"v_accvgpr_write_b32 a{i}, 0")
    e(f"s_waitcnt vmcnt({16 + (2 if opt.get('cpf', 1) else 0)})")
    k.st('xr')
    e("v_add_u32 v240, 1, v240", "v_or_b32 v31, 0x80000000, v240", "v_mov_b32 v21, 0x3f803f80", "v_readfirstlane_b32 s7, v31")
    e("v_mov_b32 v24, 0", "v_mov_b32 v25, 0", "v_mov_b32 v26, 0", "v_mov_b32 v27, 0")
    for r in range(4):
        for i in range(2):
            e(f"v_dot2c_f32_bf16 v{24+i}, v{XR+4*i+r}, v21", f"v_dot2c_f32_bf16 v{26+i}, v{XR+4*i+r}, v{XR+4*i+r}")
    e("s_nop 2")
    for ro in (8, 4, 2, 1):
        for R in (24, 25, 26, 27): e(f"v_add_f32_dpp v{R}, v{R}, v{R} row_ror:{ro} row_mask:0xf bank_mask:0xf")
    for sw in ("v_permlane32_swap_b32", "v_permlane16_swap_b32"):
        for R in (24, 25, 26, 27): e(f"v_mov_b32 v{R+220}, v{R}")
        for R in (24, 25, 26, 27): e(f"{sw} v{R}, v{R+220}")
        for R in (24, 25, 26, 27): e(f"v_add_f32 v{R}, v{R}, v{R+220}")
    e(f"s_mov_b32 s3, {hex(f2u(1.0/448))}", f"s_mov_b32 s62, {hex(f2u(1e-5))}", f"s_mov_b32 s63, {hex(f2u(LOG2E/16))}")
    for c in range(2):
        e(f"v_mul_f32 v{24+c}, s3, v{24+c}", f"v_mul_f32 v{26+c}, s3, v{26+c}")
        e(f"v_fma_f32 v{26+c}, -v{24+c}, v{24+c}, v{26+c}", f"v_max_f32 v{26+c}, 0, v{26+c}", f"v_add_f32 v{26+c}, s62, v{26+c}")
        e(f"v_rsq_f32 v{26+c}, v{26+c}", "s_nop 0", f"v_mul_f32 v{26+c}, s63, v{26+c}", f"v_mul_f32 v{24+c}, -v{24+c}, v{26+c}")
    e("s_mov_b32 s3, 0xffff0000")
    for i in range(2):
        for r in range(4):
            x = XR + 4 * i + r; t = 244 + 2 * (r & 1)
            e(f"v_lshlrev_b32 v{t}, 16, v{x}", f"v_and_b32 v{t+1}, s3, v{x}",
              f"v_fma_f32 v{t}, v{t}, v{26+i}, v{24+i}", f"v_fma_f32 v{t+1}, v{t+1}, v{26+i}, v{24+i}", f"v_cvt_pk_bf16_f32 v{x}, v{t}, v{t+1}")
        e(f"ds_write_b128 v20, {vr(XR+4*i,4)} offset:{16*i}")
    WT = opt.get('wt', 0)
    e("s_lshl_b32 s3, s36, 4", "s_lshl_b32 s49, s32, 2", "s_add_u32 s3, s3, s49", "v_lshrrev_b32 v248, 2, v22", "v_add_u32 v248, s3, v248", "v_lshlrev_b32 v248, 13, v248",
      "v_and_b32 v249, 3, v22", "v_lshl_add_u32 v248, v249, 7, v248", "v_cmp_gt_u32 vcc, 16, v22", "v_mov_b32 v249, 0x7f000000", "s_mov_b32 s49, 0x100000", "v_cndmask_b32 v248, v249, v248, vcc")
    wti = [f"buffer_load_dword v{EP+1}, v248, s[{sW}:{sW+3}], s49 offen", "s_add_u32 s49, s49, 0x100000"]
    pro(2); pro(3)
    if WT: e(*wti, *wti)
    e(*pfi)
    e("s_mov_b32 s55, s53", "s_sub_u32 s54, s53, 65536", "s_mov_b32 s60, 32768", "s_mov_b32 s61, -65536")
    e(f"s_waitcnt vmcnt({21 + 2 * WT + (2 if opt.get('cpf', 1) else 0)}) lgkmcnt(0)", "s_barrier")
    k.st('loop')
    e(f"ds_read_b128 {vr(XR,4)}, v241", f"ds_read_b128 {vr(XR+4,4)}, v241 offset:4096")
    for a in range(8):
        e(rdW(a, 0, 0, 0), rdW(a, 1, 0, 0))
    e(rdC(0, 0), rdC(1, 0))
    e(f"s_add_u32 s3, s2, 1280", "s_lshl_b32 s3, s3, 7", "s_lshl_b32 s43, s32, 2", "s_add_u32 s3, s3, s43", "v_mov_b32 v30, s3")
    e("v_lshrrev_b32 v29, 2, v22", "v_and_b32 v28, 3, v22", "v_lshlrev_b32 v28, 2, v28", "v_lshl_add_u32 v29, v29, 7, v28")
    e("s_lshl_b32 s3, s39, 11", f"s_add_u32 s3, s3, {1280*128}", "v_add_u32 v29, s3, v29")
    e("s_waitcnt lgkmcnt(15)")
    e(f"buffer_store_dwordx4 {vr(XR,4)}, v242, s[{sX}:{sX+3}], s48 offen sc1", f"buffer_store_dwordx4 {vr(XR+4,4)}, v243, s[{sX}:{sX+3}], s48 offen sc1")
    e("s_lshl_b32 s3, s39, 3", "s_lshl_b32 s43, s32, 1", "s_add_u32 s3, s3, s43", "s_mul_i32 s3, s3, 14336", f"s_add_u32 s3, s3, {hex(WS_X)}")
    e(f"s_add_u32 s{sX}, s14, s3", f"s_addc_u32 s{sX+1}, s15, 0", f"s_movk_i32 s{sX+2}, 28672")
    e("s_mov_b32 s50, 7", "s_movk_i32 s51, 0x44")
    e("s_cmp_eq_u32 s37, 1", "s_cbranch_scc1 L1_loopV")
    wcnt = [3, 3, 3, 3, 2, 2, 0, 0]
    ncp = 3 if opt.get('cpf', 1) else 0
    xl = []
    for i in range(28):
        c, m = divmod(i, 14)
        xl.append(f"buffer_load_dwordx4 {vr(XN + (m*2+c)*4, 4)}, v{20 + i // 4 % 2}, s[{sX}:{sX+3}], s{43 if i // 8 % 2 == 0 else 48} offen offset:{1024*(i%4)} sc1")
    def kstep(n, isV, last=False):
        p = n & 1
        mf = []; fill = {}
        def add(g, *t): fill.setdefault(g, []).extend(t)
        wq = [(a, jj) for a in range(8) for jj in range(2)]
        dC, dW = dmaC(n & 1), dmaW(n & 3)
        fin = last and n == 3
        for b in range(8):
            for ai in range(8):
                a = ai if b % 2 == 0 else 7 - ai
                wreg, creg = vr(Y + 32 * p + 4 * a, 4), vr(X + 4 * (b & 3), 4)
                if isV:
                    t = ar((b * 8 + a) * 4, 4); mf.append(f"v_mfma_f32_16x16x32_bf16 {t}, {creg}, {wreg}, {t}")
                else:
                    t = ar(((2 * (b >> 1) + (a & 1)) * 8 + (b & 1) * 4 + (a >> 1)) * 4, 4); mf.append(f"v_mfma_f32_16x16x32_bf16 {t}, {wreg}, {creg}, {t}")
            g0 = b * 8
            if fin: add(g0 - 1, f"s_waitcnt lgkmcnt({1 if b < 7 else 0})")
            else: add(g0 - 1, f"s_waitcnt lgkmcnt({wcnt[b-2] + 1 + wcnt[b-1]})")
            pos = g0
            if b == 0:
                vm = [17 + WT, 13 + WT, 17 + WT, 12][n] if not last else [17 + WT + ncp, 16 + WT + ncp, 23 + WT + ncp, 63][n]
                add(pos, f"s_waitcnt vmcnt({vm})", "s_barrier"); pos += 1
            if b < 6: add(pos, rdC(b + 2, n & 1))
            elif not fin: add(pos, rdC(b - 6, (n + 1) & 1))
            pos += 1
            for _ in range(wcnt[b]):
                a, jj = wq.pop(0)
                if not fin: add(pos, rdW(a, jj, (n + 1) & 3, p ^ 1))
                pos += 1
            i = b & 3
            if not last:
                d = dC if b < 4 else dW
                if i == 0: add(pos - 1, d[0])
                add(pos + (0 if b == 0 else 1), d[1 + i])
            else:
                if b < 7:
                    add(pos + (0 if b == 0 else 1), xl[7 * n + b])
                    if 7 * n + b == 15: add(pos + 2, "s_movk_i32 s43, 16384", "s_movk_i32 s48, 24576")
                if b == 4: add(g0 + 6, dW[0])
                if b >= 4: add(g0 + 7, dW[1 + i])
            if b == 5 and n & 1 == 0:
                add(g0 + 7, "s_cmp_eq_u32 s54, s55", "s_cselect_b32 s52, s61, s60")
            if b == 6:
                add(g0 + 4, f"v_add_u32 v{vC + (n & 1)}, s52, v{vC + (n & 1)}")
                if n & 1 and not last:
                    add(g0 + 5, "s_mov_b32 s53, s54", "s_add_u32 s54, s54, s52")
                    add(g0 + 6, "s_add_u32 s40, s40, 128", "s_add_u32 s41, s41, 128")
                if n & 1 and last and not fin: add(g0 + 5, "s_add_u32 s54, s54, s52")
            if b == 7:
                add(g0 + (5 if not last else 7), f"s_add_u32 s42, s42, {32*8192}")
        return mf, fill
    pf = []
    for isV in (0, 1):
        lab = "L1_loopV" if isV else "L1_loopK"
        k.label(lab)
        for n in range(4):
            mf, fill = kstep(n, isV)
            if n == 3:
                fill.setdefault(58, []).extend(["s_bitcmp1_b32 s51, s50", f"s_cbranch_scc1 {lab}_hk", f"{lab}_hr:"])
                pf += [f"{lab}_hk:", "s_cmp_eq_u32 s50, 6", f"s_cbranch_scc0 {lab}_h2", "buffer_store_dword v31, v30, s[28:31], 0 offen sc1", f"s_branch {lab}_hr",
                       f"{lab}_h2:", "buffer_load_dword v28, v29, s[28:31], 0 offen sc1", f"s_branch {lab}_hr"]
                if WT: fill.setdefault(59, []).append(wti[0]); fill.setdefault(60, []).append(wti[1])
                fill.setdefault(60, []).append(pfi[0]); fill.setdefault(61, []).append(pfi[1])
                fill.setdefault(62, []).extend(["s_sub_u32 s50, s50, 1", "s_cmp_lg_u32 s50, 0"])
                fill.setdefault(63, []).extend([f"s_cbranch_scc1 {lab}"])
            e(*weave(mf, fill))
        k.st('peel')
        e("v_cmp_ne_u32 vcc, s7, v28", f"s_cbranch_vccnz {lab}_xw", f"{lab}_xr:")
        pf += [f"{lab}_xw:", "s_mov_b32 s3, 0x10000", f"{lab}_xp:", "buffer_load_dword v28, v29, s[28:31], 0 offen sc1", "s_waitcnt vmcnt(0)", "v_cmp_ne_u32 vcc, s7, v28",
               f"s_cbranch_vccz {lab}_xr", "s_sleep 2", "s_sub_u32 s3, s3, 1", f"s_cbranch_scc0 {lab}_xp", f"s_branch {lab}_xr"]
        e(f"v_mov_b32 v20, v{vLane16}", f"v_add_u32 v21, 0x1000, v{vLane16}", "s_mov_b32 s43, 0", "s_movk_i32 s48, 8192")
        if opt.get('cpf', 1): e(*k.code_pf('L1_epi', 'L2_end', 64, 30, 31, 3))
        e(f"s_mov_b32 s{sW}, s56", f"s_mov_b32 s{sW+1}, s57", f"s_mov_b32 s{sW+2}, s58", "s_mov_b32 s42, 0")
        for n in range(4):
            mf, fill = kstep(n, isV, last=True)
            e(*weave(mf, fill))
        if not isV: e("s_branch L1_epi")
    k.label("L1_epi")
    e("s_barrier")
    k.st('epi')
    e("s_lshl_b32 s3, s34, 8")
    for a in range(8): e(f"v_subrev_u32 v{vW+a}, s3, v{vW+a}")
    e("s_lshl_b32 s64, s35, 20", "s_lshl_b32 s3, s36, 17", "s_add_u32 s64, s64, s3", "s_lshl_b32 s3, s33, 16", "s_add_u32 s64, s64, s3")
    e("s_lshl_b32 s3, s37, 24", "s_add_u32 s64, s64, s3")
    e("s_lshl_b32 s3, s34, 13", "s_add_u32 s64, s64, s3", "s_add_u32 s64, s64, 32768")
    if opt.get('lin'): e("s_lshl_b32 s64, s2, 17", "s_lshl_b32 s3, s33, 16", "s_add_u32 s64, s64, s3", "s_lshl_b32 s3, s34, 13", "s_add_u32 s64, s64, s3")
    hold = lambda i: 64 + 4 * i if i < 12 else 240 + 4 * (i - 12)
    def conv(idx, dst):
        p, j = divmod(idx, 8)
        p ^= 2
        t = EP + 8 * (idx & 1)
        l = [f"v_accvgpr_read_b32 v{t + 4*h + r}, a{((2*p + h) * 8 + j) * 4 + r}" for h in range(2) for r in range(4)]
        return l + [f"v_cvt_pk_bf16_f32 v{dst + q}, v{t + 2*q}, v{t + 2*q + 1}" for q in range(4)]
    def sto(idx, src):
        p, j = divmod(idx, 8)
        p ^= 2
        l = [f"buffer_store_dwordx4 {vr(src, 4)}, v{vLane16}, s[{sO}:{sO+3}], s64 offen offset:{1024*(j&3)}{ST}"]
        if j == 3: l += ["s_add_u32 s64, s64, 4096"]
        if j == 7: l += ["s_add_u32 s64, s64, 12288" if p != 3 else f"s_sub_u32 s64, s64, {65536 - 12288}"]
        return l
    NS0 = opt.get('ns0', 8)
    order = []; nst = 0
    assert NS0 <= 16
    for i in range(16):
        e(*conv(i, hold(i % 16)))
        if i < 6:
            d = dmaW(0)
            e(f"s_add_u32 m0, s24, {(i+4)*16384}", "s_nop 0", *d[1:], f"s_add_u32 s42, s42, {32*8192}"); order += ['D'] * 4
        elif nst < NS0:
            e(*sto(nst, hold(nst % 16))); order.append('S'); nst += 1
    while nst < NS0:
        e(*sto(nst, hold(nst % 16))); order.append('S'); nst += 1
    ydma = len(order) - 1 - max(i for i, t in enumerate(order) if t == 'D')
    early = opt['early'](k)
    k.st('ln')
    e(f"s_waitcnt vmcnt({24 + NS0})", "s_barrier")
    k.st('q')
    NR, LA = 8, 6
    def rdQ(f, jj):
        m, j = divmod(f, 16)
        off = ((m if m < 10 else m - 10) * 16384) & 0xffff
        d = Y + 4 * (f % NR) + 2 * jj
        return f"ds_read_b64_tr_b16 {vr(d,2)}, v{vW + (j & 7)} offset:{off + (j >> 3) * 256 + jj * 2048}"
    mf = []; fill = {}
    def add(g, *t): fill.setdefault(g, []).extend(t)
    for f in range(LA): add(-1, rdQ(f, 0), rdQ(f, 1))
    NF = 14 * 16
    ep_gap = {}
    G0, G1 = 2, opt.get('g1', 260)
    sg = lambda i: (G0 if NS0 < 16 else 34) + ((i - NS0) * (G1 - G0)) // max(1, 31 - NS0)
    for i in range(NS0, 32):
        if i >= 16:
            l = conv(i, hold(i - 16))
            g0 = max(2, sg(i - 16) + 3 if i - 16 >= NS0 else 2, sg(i) - 30)
            for n, x in enumerate(l): ep_gap.setdefault(g0 + n, []).append(x)
            assert g0 + 12 < sg(i), (i, g0, sg(i))
        ep_gap.setdefault(sg(i), []).extend(sto(i, hold(i % 16)))
    D0 = 134
    lastdma = D0 + 16 + 4
    waitg = 2 * (160 - LA) - 1
    young = sum(1 for g, l in ep_gap.items() for x in l if 'buffer_store' in x and lastdma <= g < waitg)
    GP, GL, GC = opt.get('gp', 350), opt.get('gl', 400), opt.get('gc', 440)
    young += (lastdma <= GP < waitg) + (GL < waitg)
    for f in range(NF):
        m, j = divmod(f, 16)
        for ci in range(2):
            c = ci if j % 2 == 0 else 1 - ci
            t = ar(128 + (j * 2 + c) * 4, 4)
            mf.append(f"v_mfma_f32_16x16x32_bf16 {t}, {vr(Y + 4*(f % NR), 4)}, {vr(XN + (m*2+c)*4, 4)}, {t if m else 0}")
        g0 = 2 * f
        nxt = f + LA
        if f % 2 == 0:
            rem = max(0, min(NF, f + LA) - (f + 2))
            add(g0 - 1, f"s_waitcnt lgkmcnt({2 * rem})")
        if nxt < NF:
            mn, jn = divmod(nxt, 16)
            if jn == 0 and mn == 4:
                y4 = ydma + (GP < g0 - 1) + sum(1 for g, l in ep_gap.items() for x in l if 'buffer_store' in x and g < g0 - 1)
                add(g0 - 1, f"s_waitcnt vmcnt({y4})", "s_barrier")
            if jn == 0 and mn in (4, 8):
                add(g0 - 1, *[f"v_add_u32 v{vW+a}, 0x10000, v{vW+a}" for a in range(8)])
            if jn == 0 and mn == 10:
                add(g0 - 1, *[f"v_subrev_u32 v{vW+a}, 0x20000, v{vW+a}" for a in range(8)])
                add(g0 - 1, f"s_waitcnt vmcnt({young if not opt.get('nowait') else 63})", "s_barrier")
            add(g0, rdQ(nxt, 0)); add(g0 + 1, rdQ(nxt, 1))
        if f == 4 * 16 + 2: add(g0, "s_barrier")
    dmag = []
    for n in range(16):
        g = D0 + 1 + n + n // 4
        if n % 4 == 0: add(g - 1, f"s_mov_b32 m0, s{24 + n // 4}")
        add(g, dmaW(0)[1 + n % 4]); dmag.append(g)
        if n % 4 == 3: add(g, f"s_add_u32 s42, s42, {32*8192}")
    assert max(dmag) < lastdma
    for g, l in ep_gap.items(): add(g, *l)
    add(2 * 164, "s_barrier")
    assert all(g < GP for g, l in ep_gap.items() for x in l if 'buffer_store' in x)
    laststore = max([-1] + [g for g, l in ep_gap.items() for x in l if 'buffer_store' in x])
    add(GP, f"s_waitcnt vmcnt({sum(1 for g in dmag if laststore < g <= GP)})", *early['publish'])
    young += (lastdma <= GP < waitg) + (GL < waitg)
    add(GL, *early['load'])
    add(GC, *early['check'])
    out = weave(mf, fill)
    for pat in opt.get('qkill', []): out = [x for x in out if pat not in x or x.endswith(':')]
    if opt.get('qconst'): out = [re.sub(r'buffer_store_dwordx4 v\[\d+:\d+\]', 'buffer_store_dwordx4 v[16:19]', x) for x in out]
    e(*out)
    k.st('qend')
    k.side = pf
    return k
```

```python
from asmlib import *
import re

MB = 1 << 20
WS_K, WS_V, WS_Q, WS_C = 0, 16 * MB, 36 * MB, 48 * MB
WS_PART = 64 * MB
WS_H = 96 * MB
WS_HH = 104 * MB
WS_X = 112 * MB
WS_FLAG = 120 * MB
WS_SIZE = 256 * MB
LOG2E = 1.4426950408889634

def f2u(x):
    import struct
    return struct.unpack('<I', struct.pack('<f', x))[0]

def ln_ops(XN, scale):
    l = []
    e = lambda *a: l.extend(a)
    e("v_mov_b32 v22, 0x3f803f80")
    e("v_mov_b32 v24, 0", "v_mov_b32 v25, 0", "v_mov_b32 v26, 0", "v_mov_b32 v27, 0")
    for m in range(14):
        for r in range(4):
            for c in range(2):
                x = XN + (m * 2 + c) * 4 + r
                e(f"v_dot2c_f32_bf16 v{24+c}, v{x}, v22", f"v_dot2c_f32_bf16 v{26+c}, v{x}, v{x}")
    e("s_nop 2")
    for sw in ("v_permlane32_swap_b32", "v_permlane16_swap_b32"):
        for R in (24, 25, 26, 27): e(f"v_mov_b32 v{R+4}, v{R}")
        e("s_nop 1")
        for R in (24, 25, 26, 27): e(f"{sw} v{R}, v{R+4}")
        for R in (24, 25, 26, 27): e(f"v_add_f32 v{R}, v{R}, v{R+4}")
    e(f"s_mov_b32 s3, {hex(f2u(1.0/448))}", f"s_mov_b32 s62, {hex(f2u(1e-5))}", f"s_mov_b32 s63, {hex(f2u(scale))}")
    for c in range(2):
        e(f"v_mul_f32 v{24+c}, s3, v{24+c}", f"v_mul_f32 v{26+c}, s3, v{26+c}")
        e(f"v_fma_f32 v{26+c}, -v{24+c}, v{24+c}, v{26+c}", f"v_max_f32 v{26+c}, 0, v{26+c}", f"v_add_f32 v{26+c}, s62, v{26+c}")
        e(f"v_rsq_f32 v{26+c}, v{26+c}", "s_nop 0", f"v_mul_f32 v{26+c}, s63, v{26+c}", f"v_mul_f32 v{24+c}, -v{24+c}, v{26+c}")
    e("s_mov_b32 s3, 0xffff0000")
    for m in range(14):
        for c in range(2):
            for r in range(4):
                x = XN + (m * 2 + c) * 4 + r
                t = 28 + 2 * (r & 1)
                e(f"v_lshlrev_b32 v{t}, 16, v{x}", f"v_and_b32 v{t+1}, s3, v{x}",
                  f"v_fma_f32 v{t}, v{t}, v{26+c}, v{24+c}", f"v_fma_f32 v{t+1}, v{t+1}, v{26+c}, v{24+c}",
                  f"v_cvt_pk_bf16_f32 v{x}, v{t}, v{t+1}")
    return l

def merge_streams(a, b):
    out = []; n = len(b); step = len(a) / (n + 0.0)
    j = 0
    for i, x in enumerate(a):
        while j < n and i >= j * step:
            out.extend(b[j]); j += 1
        out.append(x)
    while j < n: out.extend(b[j]); j += 1
    return out

def gen_k1(opt=None):
    opt = opt or {}
    ST = opt.get('st', '')
    k = K(opt.get('name', 'k1_kernel'))
    e = k.e
    END = 'L_done'
    k.prof = opt.get('prof', False); k.dbg = opt.get('dbgst')
    k.stamps = opt.get('stamps', ['start', 'epi', 'qend', 'kvdone', 'kvready', 'attn', 'aend'])
    vLane16, vW, vC, vDC, vDW, vX = 1, 2, 10, 12, 16, 20
    Y, X, XN, EP = 32, 96, 112, 224
    sC, sW, sX, sO, sP = 16, 20, 44, 72, 68
    e("s_cmp_ge_u32 s2, 256", f"s_cbranch_scc1 {END}")
    k.st('start')
    e("s_load_dwordx8 s[4:11], s[0:1], 0", "s_load_dwordx2 s[12:13], s[0:1], 32", "s_load_dwordx2 s[14:15], s[0:1], 96")
    e("v_and_b32 v22, 63, v0", "v_lshrrev_b32 v23, 6, v0", "v_lshlrev_b32 v1, 4, v22")
    e("v_readfirstlane_b32 s32, v23")
    e("v_and_b32 v24, 15, v22", "v_lshrrev_b32 v25, 4, v22")
    e("s_and_b32 s3, s2, 7", "s_lshr_b32 s33, s2, 3")
    e("s_and_b32 s36, s33, 7")
    e("s_lshr_b32 s34, s33, 3")
    e("s_and_b32 s35, s34, 1", "s_lshl_b32 s3, s3, 1", "s_add_u32 s35, s35, s3")
    e("s_lshr_b32 s37, s34, 1")
    e("s_and_b32 s38, s33, 1", "s_add_u32 s38, s38, s3")
    e("s_lshr_b32 s39, s33, 2", "s_sub_u32 s40, 15, s39", "s_bitcmp1_b32 s33, 1", "s_cselect_b32 s39, s39, s40")
    e("s_and_b32 s33, s32, 1", "s_lshr_b32 s34, s32, 1")
    e("v_lshrrev_b32 v26, 3, v22", "s_lshl_b32 s40, s32, 6", "v_add_u32 v26, s40, v26", "v_lshlrev_b32 v26, 11, v26")
    e("v_and_b32 v27, 7, v22", "v_xor_b32 v27, v27, v25", "v_xor_b32 v28, 4, v27")
    e("v_lshl_add_u32 v27, v27, 4, v26", "v_lshl_add_u32 v28, v28, 4, v26")
    for i in range(4):
        e(f"v_add_u32 v{vDC+i}, {i*16384 - 1024*i}, v{27 + (i&1)}")
    e("v_lshrrev_b32 v26, 5, v22", "v_and_b32 v27, 31, v22")
    e("s_lshl_b32 s40, s33, 3")
    e("v_lshlrev_b32 v28, 1, v26", "v_xor_b32 v27, v27, v28", "v_xor_b32 v27, s40, v27")
    e("s_lshl_b32 s40, s32, 3", "v_add_u32 v26, s40, v26", "v_lshlrev_b32 v26, 13, v26")
    e("v_xor_b32 v28, 4, v27")
    e("v_lshl_add_u32 v27, v27, 4, v26", "v_lshl_add_u32 v28, v28, 4, v26")
    for i in range(4):
        e(f"v_add_u32 v{vDW+i}, {i*16384 - 1024*i}, v{27 + (i&1)}")
    e("s_lshl_b32 s24, s32, 12", "s_add_u32 s25, s24, 16384", "s_add_u32 s26, s24, 32768", "s_add_u32 s27, s24, 49152")
    e("s_lshl_b32 s53, s32, 13", "s_add_u32 s53, s53, 65536")
    e("s_lshl_b32 s40, s36, 19", "s_lshl_b32 s42, s35, 9", "s_cmp_eq_u32 s37, 1")
    e("s_waitcnt lgkmcnt(0)")
    e("s_cselect_b32 s48, s12, s10", "s_cselect_b32 s49, s13, s11")
    e(f"s_add_u32 s{sC}, s6, s40", f"s_addc_u32 s{sC+1}, s7, 0", f"s_mov_b32 s{sC+2}, 0x80000", f"s_mov_b32 s{sC+3}, 0x20000")
    e(f"s_add_u32 s{sW}, s48, s42", f"s_addc_u32 s{sW+1}, s49, 0", f"s_sub_u32 s{sW+2}, {1024*8192}, s42", f"s_mov_b32 s{sW+3}, 0x20000")
    e("s_mov_b32 s40, 0", "s_mov_b32 s41, 65536", "s_mov_b32 s42, 0")
    def dmaC(grp):
        return [f"s_add_u32 m0, s53, {4096*grp}" if grp else "s_mov_b32 m0, s53"] + [
            f"buffer_load_dwordx4 v{vDC+i}, s[{sC}:{sC+3}], s{40+grp} offen offset:{1024*i} lds" for i in range(4)]
    def dmaW(slot):
        return [f"s_mov_b32 m0, s{24+slot}"] + [
            f"buffer_load_dwordx4 v{vDW+i}, s[{sW}:{sW+3}], s42 offen offset:{1024*i} lds" for i in range(4)]
    def seq(l): e(l[0], "s_nop 0", *l[1:])
    def pro(n):
        seq(dmaC(n & 1))
        if n & 1:
            e("s_add_u32 s40, s40, 128", "s_add_u32 s41, s41, 128", "s_add_u32 s53, s53, 32768")
        seq(dmaW(n))
        e(f"s_add_u32 s42, s42, {32*8192}")
    XR = 232
    k.srd(28, 14, 0x40000 + 128, add=WS_FLAG)
    e("v_mov_b32 v29, 0x40000", "buffer_load_dword v240, v29, s[28:31], 0 offen")
    e("s_lshl_b32 s3, s2, 3", "s_lshl_b32 s43, s32, 1", "s_add_u32 s3, s3, s43", "s_mul_i32 s3, s3, 896")
    e(f"s_add_u32 s{sX}, s4, s3", f"s_addc_u32 s{sX+1}, s5, 0", f"s_movk_i32 s{sX+2}, 896", f"s_mov_b32 s{sX+3}, 0x20000")
    e(f"buffer_load_dwordx4 {vr(XR,4)}, v{vLane16}, s[{sX}:{sX+3}], 0 offen")
    e(f"s_add_u32 s{sX}, s{sX}, 896", f"s_addc_u32 s{sX+1}, s{sX+1}, 0")
    e(f"buffer_load_dwordx4 {vr(XR+4,4)}, v{vLane16}, s[{sX}:{sX+3}], 0 offen")
    pro(0); pro(1)
    if opt.get('cpf', 1): e(*k.code_pf(k.name, 'L1_epi', 64, 30, 224, 2))
    e("s_lshl_b32 s3, s38, 9", "s_add_u32 s56, s8, s3", "s_addc_u32 s57, s9, 0", f"s_sub_u32 s58, {448*8192}, s3")
    e("v_lshrrev_b32 v26, 2, v24", "v_lshl_add_u32 v27, v25, 3, v26", "v_lshlrev_b32 v27, 9, v27")
    e("v_and_b32 v28, 3, v24", "v_lshl_add_u32 v27, v28, 3, v27")
    e("s_lshl_b32 s3, s34, 8", "v_add_u32 v27, s3, v27")
    e("v_and_b32 v28, 1, v25", "v_lshl_add_u32 v28, v28, 2, v26")
    for a in range(8):
        e(f"v_xor_b32 v29, {a}, v28", f"v_lshl_add_u32 v{vW+a}, v29, 5, v27")
    e("s_lshl_b32 s3, s33, 7", "v_add_u32 v26, s3, v24", "v_lshlrev_b32 v26, 7, v26", "v_add_u32 v26, 65536, v26")
    e("v_lshrrev_b32 v27, 1, v24", "v_xor_b32 v27, v27, v25", "v_xor_b32 v28, 4, v27")
    e(f"v_lshl_add_u32 v{vC}, v27, 4, v26", f"v_lshl_add_u32 v{vC+1}, v28, 4, v26")
    PS = opt.get('ps', 4)
    def pfdesc(S, bufs, CH, t=59):
        e(f"s_mov_b32 s{S}, s{bufs[0][0]}", f"s_mov_b32 s{S+1}, s{bufs[0][0]+1}", f"s_mov_b32 s{S+2}, {bufs[0][1]}", f"s_mov_b32 s{S+3}, 0x20000", f"s_mov_b32 s{t}, 0")
        first = -(-bufs[0][1] // CH)
        for ptr, size in bufs[1:]:
            e(f"s_cmp_ge_u32 s2, {first}", f"s_cselect_b32 s{S}, s{ptr}, s{S}", f"s_cselect_b32 s{S+1}, s{ptr+1}, s{S+1}",
              f"s_cselect_b32 s{S+2}, {size}, s{S+2}", f"s_cselect_b32 s{t}, {first}, s{t}")
            first += -(-size // CH)
        assert first <= 256, first
        e(f"s_sub_u32 s{t}, s2, s{t}", f"s_mul_i32 s{t}, s{t}, {CH}")
        e(f"s_add_u32 s{S}, s{S}, s{t}", f"s_addc_u32 s{S+1}, s{S+1}, 0", f"s_sub_u32 s{S+2}, s{S+2}, s{t}", f"s_cselect_b32 s{S+2}, 0, s{S+2}",
          f"s_min_u32 s{S+2}, s{S+2}, {CH}")
    pfdesc(sP, [(8, 448*8192)], 16384)
    k.tailpf0 = lambda: e("s_load_dwordx2 s[52:53], s[0:1], 40", "s_load_dwordx4 s[56:59], s[0:1], 56", "s_load_dwordx2 s[54:55], s[0:1], 72")
    k.tailpf = lambda: (e("s_waitcnt lgkmcnt(0)"), pfdesc(64, [(52, 4096*896), (56, 448*3584), (58, 448*3584), (54, 1792*896)], 34816, 60))
    e(f"v_lshlrev_b32 v23, {PS}, v0", "s_mov_b32 s59, 0")
    k.srd(sO, 14, WS_C if not opt.get('oob') else 0)
    if opt.get('oobv'): e('s_cmp_eq_u32 s37, 1', f's_cselect_b32 s{sO+2}, 0, s{sO+2}')
    pfi = [f"buffer_load_dword v{EP}, v23, s[{sP}:{sP+3}], s59 offen", f"s_add_u32 s59, s59, {256 << PS}"]
    def rdW(a, jj, slot, p):
        d = Y + 32 * p + 4 * a + 2 * jj
        return f"ds_read_b64_tr_b16 {vr(d,2)}, v{vW+a} offset:{slot*16384 + jj*2048}"
    def rdC(b, sp):
        return f"ds_read_b128 {vr(X + 4*(b&3),4)}, v{vC+sp} offset:{b*2048}"
    e("s_lshr_b32 s3, s2, 1", "s_mul_i32 s3, s3, 14336", f"s_add_u32 s3, s3, {hex(WS_X)}")
    e(f"s_add_u32 s{sX}, s14, s3", f"s_addc_u32 s{sX+1}, s15, 0", f"s_movk_i32 s{sX+2}, 14336")
    e("s_lshl_b32 s3, s32, 5", f"s_add_u32 s3, s3, {128*1024}", "v_lshlrev_b32 v20, 7, v22", "v_add_u32 v20, s3, v20")
    e("v_lshlrev_b32 v241, 4, v0", f"v_add_u32 v241, {128*1024}, v241")
    e("v_lshrrev_b32 v242, 3, v0", "v_and_b32 v243, 7, v0", "v_lshlrev_b32 v243, 4, v243", "v_lshl_add_u32 v242, v242, 8, v243")
    e("s_and_b32 s48, s2, 1", "s_lshl_b32 s48, s48, 7", "v_add_u32 v243, 0x2000, v242")
    for i in range(256): e(f"v_accvgpr_write_b32 a{i}, 0")
    e(f"s_waitcnt vmcnt({16 + (2 if opt.get('cpf', 1) else 0)})")
    k.st('xr')
    e("v_add_u32 v240, 1, v240", "v_or_b32 v31, 0x80000000, v240", "v_mov_b32 v21, 0x3f803f80", "v_readfirstlane_b32 s7, v31")
    e("v_mov_b32 v24, 0", "v_mov_b32 v25, 0", "v_mov_b32 v26, 0", "v_mov_b32 v27, 0")
    for r in range(4):
        for i in range(2):
            e(f"v_dot2c_f32_bf16 v{24+i}, v{XR+4*i+r}, v21", f"v_dot2c_f32_bf16 v{26+i}, v{XR+4*i+r}, v{XR+4*i+r}")
    e("s_nop 2")
    for ro in (8, 4, 2, 1):
        for R in (24, 25, 26, 27): e(f"v_add_f32_dpp v{R}, v{R}, v{R} row_ror:{ro} row_mask:0xf bank_mask:0xf")
    for sw in ("v_permlane32_swap_b32", "v_permlane16_swap_b32"):
        for R in (24, 25, 26, 27): e(f"v_mov_b32 v{R+220}, v{R}")
        for R in (24, 25, 26, 27): e(f"{sw} v{R}, v{R+220}")
        for R in (24, 25, 26, 27): e(f"v_add_f32 v{R}, v{R}, v{R+220}")
    e(f"s_mov_b32 s3, {hex(f2u(1.0/448))}", f"s_mov_b32 s62, {hex(f2u(1e-5))}", f"s_mov_b32 s63, {hex(f2u(LOG2E/16))}")
    for c in range(2):
        e(f"v_mul_f32 v{24+c}, s3, v{24+c}", f"v_mul_f32 v{26+c}, s3, v{26+c}")
        e(f"v_fma_f32 v{26+c}, -v{24+c}, v{24+c}, v{26+c}", f"v_max_f32 v{26+c}, 0, v{26+c}", f"v_add_f32 v{26+c}, s62, v{26+c}")
        e(f"v_rsq_f32 v{26+c}, v{26+c}", "s_nop 0", f"v_mul_f32 v{26+c}, s63, v{26+c}", f"v_mul_f32 v{24+c}, -v{24+c}, v{26+c}")
    e("s_mov_b32 s3, 0xffff0000")
    for i in range(2):
        for r in range(4):
            x = XR + 4 * i + r; t = 244 + 2 * (r & 1)
            e(f"v_lshlrev_b32 v{t}, 16, v{x}", f"v_and_b32 v{t+1}, s3, v{x}",
              f"v_fma_f32 v{t}, v{t}, v{26+i}, v{24+i}", f"v_fma_f32 v{t+1}, v{t+1}, v{26+i}, v{24+i}", f"v_cvt_pk_bf16_f32 v{x}, v{t}, v{t+1}")
        e(f"ds_write_b128 v20, {vr(XR+4*i,4)} offset:{16*i}")
    WT = opt.get('wt', 0)
    e("s_lshl_b32 s3, s36, 4", "s_lshl_b32 s49, s32, 2", "s_add_u32 s3, s3, s49", "v_lshrrev_b32 v248, 2, v22", "v_add_u32 v248, s3, v248", "v_lshlrev_b32 v248, 13, v248",
      "v_and_b32 v249, 3, v22", "v_lshl_add_u32 v248, v249, 7, v248", "v_cmp_gt_u32 vcc, 16, v22", "v_mov_b32 v249, 0x7f000000", "s_mov_b32 s49, 0x100000", "v_cndmask_b32 v248, v249, v248, vcc")
    wti = [f"buffer_load_dword v{EP+1}, v248, s[{sW}:{sW+3}], s49 offen", "s_add_u32 s49, s49, 0x100000"]
    pro(2); pro(3)
    if WT: e(*wti, *wti)
    e(*pfi)
    e("s_mov_b32 s55, s53", "s_sub_u32 s54, s53, 65536", "s_mov_b32 s60, 32768", "s_mov_b32 s61, -65536")
    e(f"s_waitcnt vmcnt({21 + 2 * WT + (2 if opt.get('cpf', 1) else 0)}) lgkmcnt(0)", "s_barrier")
    k.st('loop')
    e(f"ds_read_b128 {vr(XR,4)}, v241", f"ds_read_b128 {vr(XR+4,4)}, v241 offset:4096")
    for a in range(8):
        e(rdW(a, 0, 0, 0), rdW(a, 1, 0, 0))
    e(rdC(0, 0), rdC(1, 0))
    e(f"s_add_u32 s3, s2, 1280", "s_lshl_b32 s3, s3, 7", "s_lshl_b32 s43, s32, 2", "s_add_u32 s3, s3, s43", "v_mov_b32 v30, s3")
    e("v_lshrrev_b32 v29, 2, v22", "v_and_b32 v28, 3, v22", "v_lshlrev_b32 v28, 2, v28", "v_lshl_add_u32 v29, v29, 7, v28")
    e("s_lshl_b32 s3, s39, 11", f"s_add_u32 s3, s3, {1280*128}", "v_add_u32 v29, s3, v29")
    e("s_waitcnt lgkmcnt(15)")
    e(f"buffer_store_dwordx4 {vr(XR,4)}, v242, s[{sX}:{sX+3}], s48 offen sc1", f"buffer_store_dwordx4 {vr(XR+4,4)}, v243, s[{sX}:{sX+3}], s48 offen sc1")
    e("s_lshl_b32 s3, s39, 3", "s_lshl_b32 s43, s32, 1", "s_add_u32 s3, s3, s43", "s_mul_i32 s3, s3, 14336", f"s_add_u32 s3, s3, {hex(WS_X)}")
    e(f"s_add_u32 s{sX}, s14, s3", f"s_addc_u32 s{sX+1}, s15, 0", f"s_movk_i32 s{sX+2}, 28672")
    e("s_mov_b32 s50, 7", "s_movk_i32 s51, 0x44")
    e("s_cmp_eq_u32 s37, 1", "s_cbranch_scc1 L1_loopV")
    wcnt = [3, 3, 3, 3, 2, 2, 0, 0]
    ncp = 3 if opt.get('cpf', 1) else 0
    xl = []
    for i in range(28):
        c, m = divmod(i, 14)
        xl.append(f"buffer_load_dwordx4 {vr(XN + (m*2+c)*4, 4)}, v{20 + i // 4 % 2}, s[{sX}:{sX+3}], s{43 if i // 8 % 2 == 0 else 48} offen offset:{1024*(i%4)} sc1")
    def kstep(n, isV, last=False):
        p = n & 1
        mf = []; fill = {}
        def add(g, *t): fill.setdefault(g, []).extend(t)
        wq = [(a, jj) for a in range(8) for jj in range(2)]
        dC, dW = dmaC(n & 1), dmaW(n & 3)
        fin = last and n == 3
        for b in range(8):
            for ai in range(8):
                a = ai if b % 2 == 0 else 7 - ai
                wreg, creg = vr(Y + 32 * p + 4 * a, 4), vr(X + 4 * (b & 3), 4)
                if isV:
                    t = ar((b * 8 + a) * 4, 4); mf.append(f"v_mfma_f32_16x16x32_bf16 {t}, {creg}, {wreg}, {t}")
                else:
                    t = ar(((2 * (b >> 1) + (a & 1)) * 8 + (b & 1) * 4 + (a >> 1)) * 4, 4); mf.append(f"v_mfma_f32_16x16x32_bf16 {t}, {wreg}, {creg}, {t}")
            g0 = b * 8
            if fin: add(g0 - 1, f"s_waitcnt lgkmcnt({1 if b < 7 else 0})")
            else: add(g0 - 1, f"s_waitcnt lgkmcnt({wcnt[b-2] + 1 + wcnt[b-1]})")
            pos = g0
            if b == 0:
                if not last: add(pos, f"s_waitcnt vmcnt({[17 + WT, 13 + WT, 17 + WT, 12][n]})")
                elif n < 3: add(pos, "VW " + ["W29", "C27", "W31"][n])
                add(pos, "s_barrier"); pos += 1
            if b < 6: add(pos, rdC(b + 2, n & 1))
            elif not fin: add(pos, rdC(b - 6, (n + 1) & 1))
            pos += 1
            for _ in range(wcnt[b]):
                a, jj = wq.pop(0)
                if not fin: add(pos, rdW(a, jj, (n + 1) & 3, p ^ 1))
                pos += 1
            i = b & 3
            if not last:
                d = dC if b < 4 else dW
                if i == 0: add(pos - 1, d[0])
                add(pos + (0 if b == 0 else 1), d[1 + i])
            else:
                if b < 7:
                    add(g0 + 3, xl[7 * n + b] + " ;#xn")
                    if 7 * n + b == 15: add(g0 + 4, "s_movk_i32 s43, 16384", "s_movk_i32 s48, 24576")
                if b == 0: add(g0 + 6, f"s_add_u32 m0, s24, {(6 + n)*16384}")
                if b == 4: add(g0 + 6, dW[0])
                if b < 4: add(g0 + 7, dW[1 + i].replace("s42", "s49") + f" ;#Q{6+n}")
                else: add(g0 + 7, dW[1 + i] + f" ;#Q{n}")
                if b == 4: add(g0, f"s_add_u32 s49, s49, {32*8192}")
            if b == 5 and n & 1 == 0:
                add(g0 + 7, "s_cmp_eq_u32 s54, s55", "s_cselect_b32 s52, s61, s60")
            if b == 6:
                add(g0 + 4, f"v_add_u32 v{vC + (n & 1)}, s52, v{vC + (n & 1)}")
                if n & 1 and not last:
                    add(g0 + 5, "s_mov_b32 s53, s54", "s_add_u32 s54, s54, s52")
                    add(g0 + 6, "s_add_u32 s40, s40, 128", "s_add_u32 s41, s41, 128")
                if n & 1 and last and not fin: add(g0 + 5, "s_add_u32 s54, s54, s52")
            if b == 7:
                add(g0 + (5 if not last else 7), f"s_add_u32 s42, s42, {32*8192}")
        return mf, fill
    pf = []
    for isV in (0, 1):
        lab = "L1_loopV" if isV else "L1_loopK"
        k.label(lab)
        for n in range(4):
            mf, fill = kstep(n, isV)
            if n == 3:
                fill.setdefault(58, []).extend(["s_bitcmp1_b32 s51, s50", f"s_cbranch_scc1 {lab}_hk", f"{lab}_hr:"])
                pf += [f"{lab}_hk:", "s_cmp_eq_u32 s50, 6", f"s_cbranch_scc0 {lab}_h2", "buffer_store_dword v31, v30, s[28:31], 0 offen sc1", f"s_branch {lab}_hr",
                       f"{lab}_h2:", "buffer_load_dword v28, v29, s[28:31], 0 offen sc1", f"s_branch {lab}_hr"]
                if WT: fill.setdefault(59, []).append(wti[0]); fill.setdefault(60, []).append(wti[1])
                fill.setdefault(60, []).append(pfi[0]); fill.setdefault(61, []).append(pfi[1])
                fill.setdefault(62, []).extend(["s_sub_u32 s50, s50, 1", "s_cmp_lg_u32 s50, 0"])
                fill.setdefault(63, []).extend([f"s_cbranch_scc1 {lab}"])
            e(*weave(mf, fill))
        k.st('peel')
        e("v_cmp_ne_u32 vcc, s7, v28", f"s_cbranch_vccnz {lab}_xw", f"{lab}_xr:")
        pf += [f"{lab}_xw:", "s_mov_b32 s3, 0x10000", f"{lab}_xp:", "buffer_load_dword v28, v29, s[28:31], 0 offen sc1", "s_waitcnt vmcnt(0)", "v_cmp_ne_u32 vcc, s7, v28",
               f"s_cbranch_vccz {lab}_xr", "s_sleep 2", "s_sub_u32 s3, s3, 1", f"s_cbranch_scc0 {lab}_xp", f"s_branch {lab}_xr"]
        e(f"v_mov_b32 v20, v{vLane16}", f"v_add_u32 v21, 0x1000, v{vLane16}", "s_mov_b32 s43, 0", "s_movk_i32 s48, 8192")
        vq = VQ(['C25'] * 4 + ['W29'] * 4 + ['C26'] * 4 + ['W30'] * 4 + ['C27'] * 4 + ['W31'] * 4 + ['-'] * (1 + WT))
        if opt.get('cpf', 1): e(*vq.run(k.code_pf('L1_epi', 'L2_end', 64, 30, 31, 3)))
        e(f"s_mov_b32 s{sW}, s56", f"s_mov_b32 s{sW+1}, s57", f"s_mov_b32 s{sW+2}, s58", "s_mov_b32 s42, 0", f"s_mov_b32 s49, {6*32*8192}")
        for n in range(4):
            mf, fill = kstep(n, isV, last=True)
            e(*vq.run(weave(mf, fill)))
        if not isV: e("s_branch L1_epi")
    k.label("L1_epi")
    e("s_barrier")
    k.st('epi')
    e("s_lshl_b32 s3, s34, 8")
    for a in range(8): e(f"v_subrev_u32 v{vW+a}, s3, v{vW+a}")
    e("s_lshl_b32 s64, s35, 20", "s_lshl_b32 s3, s36, 17", "s_add_u32 s64, s64, s3", "s_lshl_b32 s3, s33, 16", "s_add_u32 s64, s64, s3")
    e("s_add_u32 s3, s35, 513", "s_lshl_b32 s3, s3, 15", "s_mul_i32 s3, s3, s37", "s_add_u32 s64, s64, s3")
    e("s_lshl_b32 s3, s34, 13", "s_add_u32 s64, s64, s3", "s_add_u32 s64, s64, 32768")
    if opt.get('lin'): e("s_lshl_b32 s64, s2, 17", "s_lshl_b32 s3, s33, 16", "s_add_u32 s64, s64, s3", "s_lshl_b32 s3, s34, 13", "s_add_u32 s64, s64, s3")
    hold = lambda i: 64 + 4 * i if i < 12 else 240 + 4 * (i - 12)
    def conv(idx, dst):
        p, j = divmod(idx, 8)
        p ^= 2
        t = EP + 8 * (idx & 1)
        l = [f"v_accvgpr_read_b32 v{t + 4*h + r}, a{((2*p + h) * 8 + j) * 4 + r}" for h in range(2) for r in range(4)]
        return l + [f"v_cvt_pk_bf16_f32 v{dst + q}, v{t + 2*q}, v{t + 2*q + 1}" for q in range(4)]
    def sto(idx, src):
        p, j = divmod(idx, 8)
        p ^= 2
        l = [f"buffer_store_dwordx4 {vr(src, 4)}, v{vLane16}, s[{sO}:{sO+3}], s64 offen offset:{1024*(j&3)}{ST}"]
        if j == 3: l += ["s_add_u32 s64, s64, 4096"]
        if j == 7: l += ["s_add_u32 s64, s64, 12288" if p != 3 else f"s_sub_u32 s64, s64, {65536 - 12288}"]
        return l
    NS0 = opt.get('ns0', 8)
    assert NS0 <= 16
    for i in range(16):
        e(*conv(i, hold(i)))
        if i >= 16 - NS0 or (i % 2 == 1 and False): pass
    pre = []
    for i in range(NS0): pre += tag(sto(i, hold(i)), 'S')
    L0 = len(k.L) - 16 * 12
    body = k.L[L0:]; del k.L[L0:]
    st_groups = [tag(sto(i, hold(i)), 'S') for i in range(NS0)]
    for i in range(16):
        e(*body[12 * i:12 * i + 12])
        if i % 2 == 1 and st_groups and i // 2 < NS0: e(*vq.run(st_groups.pop(0)))
    for g_ in st_groups: e(*vq.run(g_))
    early = opt['early'](k)
    k.st('ln')
    e(*vq.run(["VW xn Q0 Q1 Q2 Q3"]), "s_barrier")
    k.st('q')
    NR, LA = 8, 6
    def rdQ(f, jj):
        m, j = divmod(f, 16)
        off = ((m if m < 10 else m - 10) * 16384) & 0xffff
        d = Y + 4 * (f % NR) + 2 * jj
        return f"ds_read_b64_tr_b16 {vr(d,2)}, v{vW + (j & 7)} offset:{off + (j >> 3) * 256 + jj * 2048}"
    mf = []; fill = {}
    def add(g, *t): fill.setdefault(g, []).extend(t)
    for f in range(LA): add(-1, rdQ(f, 0), rdQ(f, 1))
    NF = 14 * 16
    ep_gap = {}
    G0, G1 = 2, opt.get('g1', 220)
    sg = lambda i: (G0 if NS0 < 16 else 34) + ((i - NS0) * (G1 - G0)) // max(1, 31 - NS0)
    for i in range(NS0, 32):
        if i >= 16:
            l = conv(i, hold(i - 16))
            g0 = max(2, sg(i - 16) + 3 if i - 16 >= NS0 else 2, sg(i) - 30)
            for n, x in enumerate(l): ep_gap.setdefault(g0 + n, []).append(x)
            assert g0 + 12 < sg(i), (i, g0, sg(i))
        ep_gap.setdefault(sg(i), []).extend(tag(sto(i, hold(i % 16)), 'S'))
    GP, GL, GC = opt.get('gp', 300), opt.get('gl', 330), opt.get('gc', 370)
    for f in range(NF):
        m, j = divmod(f, 16)
        for ci in range(2):
            c = ci if j % 2 == 0 else 1 - ci
            t = ar(128 + (j * 2 + c) * 4, 4)
            mf.append(f"v_mfma_f32_16x16x32_bf16 {t}, {vr(Y + 4*(f % NR), 4)}, {vr(XN + (m*2+c)*4, 4)}, {t if m else 0}")
        g0 = 2 * f
        nxt = f + LA
        if f % 2 == 0:
            rem = max(0, min(NF, f + LA) - (f + 2))
            add(g0 - 1, f"s_waitcnt lgkmcnt({2 * rem})")
        if nxt < NF:
            mn, jn = divmod(nxt, 16)
            if jn == 0 and mn == 4:
                add(g0 - 1, "VW Q4 Q5 Q6 Q7 Q8 Q9", "s_barrier")
            if jn == 0 and mn in (4, 8):
                add(g0 - 1, *[f"v_add_u32 v{vW+a}, 0x10000, v{vW+a}" for a in range(8)])
            if jn == 0 and mn == 10:
                add(g0 - 1, *[f"v_subrev_u32 v{vW+a}, 0x20000, v{vW+a}" for a in range(8)])
                add(g0 - 1, "VW Q10 Q11 Q12 Q13", "s_barrier")
            add(g0, rdQ(nxt, 0)); add(g0 + 1, rdQ(nxt, 1))
        if f == 4 * 16 + 2: add(g0, "s_barrier")
    DS = opt.get('ds', 6)
    for n in range(8):
        g = 2 + DS * n
        if n % 4 == 0: add(g - 1, f"s_add_u32 m0, s24, {(4 + n // 4)*16384}")
        add(g, dmaW(0)[1 + n % 4] + f" ;#Q{4 + n // 4}")
        if n % 4 == 3: add(g, f"s_add_u32 s42, s42, {32*8192 * (1 if n == 3 else 5)}")
    for n in range(16):
        g = 135 + DS * n
        if n % 4 == 0: add(g - 1, f"s_mov_b32 m0, s{24 + n // 4}")
        add(g, dmaW(0)[1 + n % 4] + f" ;#Q{10 + n // 4}")
        if n % 4 == 3: add(g, f"s_add_u32 s42, s42, {32*8192}")
    for g, l in ep_gap.items(): add(g, *l)
    add(2 * 164, "s_barrier")
    assert all(g < GP for g, l in ep_gap.items() for x in l if 'buffer_store' in x) and GC > 2 * 164
    add(GP, "VW S", *early['publish'])
    add(GL, *tag(early['load'], 'P'))
    add(GC, "VW P", *early['check'])
    d = early['dma']; nd = sum(1 for x in d if x.startswith('buffer_'))
    g = GC + 1; step = (446 - g) / nd; cnt = 0
    for x in d:
        if x == "s_nop 0": continue
        if x.startswith('buffer_'): cnt += 1; add(g + int(cnt * step), x)
        else: add(g + int(cnt * step) + (1 if 'm0' not in x or int((cnt + 1) * step) > int(cnt * step) + 1 else 0), x)
    for i, g in enumerate(opt.get('qst', [])):
        j = k.stamps.index(f'g{g}')
        fill.setdefault(g, []).extend(["s_memtime s[80:81]", "s_memrealtime s[84:85]", "s_waitcnt lgkmcnt(0)", f"s_mov_b32 s{86+2*j}, s80", f"s_mov_b32 s{87+2*j}, s84"])
    out = vq.run(weave(mf, fill))
    for pat in opt.get('qkill', []): out = [x for x in out if pat not in x or x.endswith(':')]
    if opt.get('qconst'): out = [re.sub(r'buffer_store_dwordx4 v\[\d+:\d+\]', 'buffer_store_dwordx4 v[16:19]', x) for x in out]
    e(*out)
    k.st('qend')
    k.side = pf
    return k
```

```python
from asmlib import *
from k1 import MB, WS_K, WS_V, WS_Q, WS_C, WS_PART, WS_FLAG, WS_SIZE, f2u
WS_STAT = WS_PART + 16 * MB
NA = 40

def gen_k2(k, opt=None, early=False):
    opt = opt or {}
    e = k.e
    THR = opt.get('thr', 2.0 ** 20)
    STF = opt.get('st', ' sc1')
    LD = opt.get('ld', ' sc1')
    vL16, vB, vD, vLB = 1, 2, 3, 4
    vQ, vNM, vL = 5, 7, 9
    T = 13
    CI, S, E, P, EP, O = 16, 32, 64, 80, 96, 128
    aQ, aR, aP = 0, 64, 128
    sK, sV, sQ, sO, sF = 8, 16, 20, 24, 28
    sS = 34
    NEG = -1e30
    ci = lambda kt, c: CI + (kt * 2 + c) * 4
    sreg = lambda par, kt, c: S + 16 * par + (kt * 2 + c) * 4
    ereg = lambda kt, c: E + (kt * 2 + c) * 4
    preg = lambda par, c: P + 8 * par + 4 * c
    oreg = lambda i, c: O + (i * 2 + c) * 4
    lreg = lambda par, c: vL + 2 * par + c

    def dmaK(q, vd=vD): return [f"s_mov_b32 m0, s{sS + (q^1)}"] + [f"buffer_load_dwordx4 v{vd}, s[{sK}:{sK+3}], s32 offen offset:{1024*i}{LD} lds" for i in range(4)]
    def dmaV(q, vd=vD): return [f"s_add_u32 m0, s{sS + (q^1)}, 16384"] + [f"buffer_load_dwordx4 v{vd}, s[{sV}:{sV+3}], s32 offen offset:{1024*i}{LD} lds" for i in range(4)] + ["s_add_u32 s32, s32, 16384"]
    def xstep(st, vd):
        d = dmaK(0, vd); l = [d[0], "s_nop 0", *d[1:]]
        d = dmaV(0, vd)
        l += [d[0], "s_nop 0", *d[1:]] if st >= 2 else [d[-1]]
        return l
    def publish(off_sreg):
        return ["s_lshl_b32 s3, s44, 2", f"v_mov_b32 v{T}, s3", f"v_mov_b32 v{T+1}, s7", f"buffer_store_dword v{T+1}, v{T}, s[{sF}:{sF+3}], s{off_sreg} offen sc1"]
    uid = [0]
    def polladdr(nfl):
        return [f"v_bfe_u32 v{T}, v0, 2, 4", f"v_min_u32 v{T}, {nfl - 1}, v{T}", f"v_and_b32 v{T+1}, 3, v0", f"v_lshlrev_b32 v{T+1}, 2, v{T+1}", f"v_lshl_add_u32 v{T}, v{T}, 7, v{T+1}"]
    def poll(off_sreg, nfl):
        uid[0] += 1; u = uid[0]
        return polladdr(nfl) + ["s_mov_b32 s55, 0x10000", f"L2_poll{u}:",
                f"buffer_load_dword v{T+1}, v{T}, s[{sF}:{sF+3}], s{off_sreg} offen sc1", "s_waitcnt vmcnt(0)", f"v_cmp_ne_u32 vcc, s7, v{T+1}",
                f"s_cbranch_vccz L2_got{u}", "s_sleep 2", "s_sub_u32 s55, s55, 1", f"s_cbranch_scc0 L2_poll{u}", f"L2_got{u}:"]
    rare_blocks = []
    first3 = lambda: xstep(0, 20) + [f"s_add_u32 s{sS+1}, s{sS+1}, 32768"] + xstep(1, 20) + [f"s_add_u32 s{sS+1}, s{sS+1}, 32768"] + xstep(2, 20)
    if early:
        e("s_lshl_b32 s6, s35, 1", "s_add_u32 s6, s6, s37", "s_lshl_b32 s6, s6, 3", "s_add_u32 s6, s6, s36", "s_lshl_b32 s6, s6, 7")
        e("s_mov_b32 s44, s32")
        e("s_and_b32 s3, s2, 7", "s_lshr_b32 s46, s2, 3", "s_and_b32 s45, s46, 1", "s_lshl_b32 s3, s3, 1", "s_add_u32 s45, s45, s3")
        e("s_lshr_b32 s46, s46, 1", "s_and_b32 s47, s46, 1", "s_lshr_b32 s46, s46, 1")
        e("s_lshl_b32 s4, s45, 3", "s_add_u32 s4, s4, s46", "s_lshl_b32 s4, s4, 7", f"s_add_u32 s5, s4, {384*128}", f"s_add_u32 s4, s4, {256*128}")
        e("s_lshl_b32 s3, s46, 2", "s_add_u32 s49, s3, 4", "s_mov_b32 s48, s46", "s_mov_b32 s50, 0")
        e("s_lshl_b32 s41, s46, 7", "s_add_u32 s41, s41, 64", f"s_sub_u32 s43, {64 - NA}, s3")
        e("s_sub_u32 s52, 64, s3", f"s_cmp_ge_u32 s46, {(64 - NA) // 4 + ((64 - NA) % 4 > 0)}", "s_cselect_b32 s41, -1, s41", f"s_cselect_b32 s52, s52, {NA}", "s_cselect_b32 s51, 0, s43", "s_cselect_b32 s53, 0, 2")
        e("s_sub_u32 s3, 15, s46", "s_cmp_eq_u32 s47, 0")
        e("s_cselect_b32 s48, s3, s48", "s_cselect_b32 s49, s52, s49", "s_cselect_b32 s50, s53, s50", "s_cselect_b32 s41, -1, s41", "s_cselect_b32 s51, s51, 0")
        e("s_sub_u32 s39, s49, 4", "s_mov_b32 s33, 0", "s_lshl_b32 s37, s44, 12", f"v_add_u32 v20, s37, v{vL16}")
        e("s_lshl_b32 s3, s45, 20", "s_lshl_b32 s51, s51, 14", "s_add_u32 s51, s51, s3")
        e(f"s_add_u32 s{sK}, s14, s51", f"s_addc_u32 s{sK+1}, s15, 0", f"s_lshl_b32 s{sK+2}, s49, 14", f"s_mov_b32 s{sK+3}, 0x20000")
        e("s_add_u32 s3, s45, 512", "s_lshl_b32 s3, s3, 15")
        e(f"s_add_u32 s{sV}, s{sK}, s3", f"s_addc_u32 s{sV+1}, s{sK+1}, 0", f"s_add_u32 s{sV+2}, s{sK+2}, 32768", f"s_mov_b32 s{sV+3}, 0x20000")
        e("s_mov_b32 s32, 0", f"s_add_u32 s{sS+1}, s37, 65536", "s_lshl_b32 s52, s45, 11", "s_mov_b32 s53, 0")
        return {'publish': publish(6),
                'load': polladdr(16) + [f"buffer_load_dword v{T+1}, v{T}, s[{sF}:{sF+3}], s52 offen sc1"],
                'check': [f"v_cmp_ne_u32 vcc, s7, v{T+1}", "s_cmp_eq_u64 vcc, 0", "s_cselect_b32 s53, 1, 0", f"s_cselect_b32 s{sK+2}, s{sK+2}, 0", f"s_cselect_b32 s{sV+2}, s{sV+2}, 0"],
                'dma': first3()}
    rare_blocks += k.side
    e("s_barrier")
    e("s_cmp_eq_u32 s53, 1", "s_cbranch_scc1 L2_ready")
    e(f"s_lshl_b32 s{sK+2}, s49, 14", f"s_add_u32 s{sV+2}, s{sK+2}, 32768", "s_mov_b32 s32, 0", f"s_add_u32 s{sS+1}, s37, 65536")
    e(*poll(52, 16), *first3())
    k.label("L2_ready")
    k.st('kvready')
    e(f"s_mov_b32 s{sS+1}, s37", *xstep(3, 20))
    e(f"s_add_u32 s{sS+1}, s37, 32768", f"s_add_u32 s{sS}, s37, 65536", f"s_add_u32 s36, s37, {5*32768}")
    k.tailpf0()
    for c in range(2):
        for t in range(8):
            b = EP + 12 * (t & 1)
            for h in range(2):
                for r in range(4): e(f"v_accvgpr_read_b32 v{b + 4*h + r}, a{128 + ((2*t + h)*2 + c)*4 + r}")
            for q in range(4): e(f"v_cvt_pk_bf16_f32 v{b + 8 + q}, v{b + 2*q}, v{b + 2*q + 1}")
            for q in range(4): e(f"v_accvgpr_write_b32 a{aQ + (c*8 + t)*4 + q}, v{b + 8 + q}")
    k.tailpf()
    e(f"v_mov_b32 v{vD}, v20", f"v_subrev_u32 v{vLB}, s37, v{vL16}", f"v_add_u32 v{vB}, 0x10000, v{vL16}")
    e("s_lshl_b32 s3, s45, 19", f"s_add_u32 s3, s3, {hex(WS_Q)}", f"s_add_u32 s{sQ}, s14, s3", f"s_addc_u32 s{sQ+1}, s15, 0", f"s_mov_b32 s{sQ+2}, 0x80000", f"s_mov_b32 s{sQ+3}, 0x20000")
    k.srd(sO, 14, WS_SIZE)
    def qio(op, flags):
        l = ["s_lshl_b32 s54, s46, 16", "s_lshl_b32 s55, s44, 14", "s_add_u32 s54, s54, s55"]
        for i in range(16):
            if i and i % 4 == 0: l.append("s_add_u32 s54, s54, 4096")
            l.append(f"{op} {ar(aQ + 4*i, 4)}, v{vL16}, s[{sQ}:{sQ+3}], s54 offen offset:{1024*(i%4)}{flags}")
        return l
    e(f"s_mov_b32 s38, {hex(f2u(THR))}", "s_mov_b32 s79, 0", "v_lshlrev_b32 v124, 5, v0", "s_mov_b32 s63, 0", "s_mov_b32 s70, s52", "s_mov_b32 s71, s53")
    e("s_cmp_eq_u32 s41, -1", f"s_cselect_b32 s62, {opt.get('l2at', -2)}, -1")
    for r in range(O, O + 128, 2): e(f"v_mov_b64 {vr(r,2)}, 0")
    e("s_waitcnt vmcnt(20)", "s_barrier")
    e("s_lshl_b32 s54, s46, 16", "s_lshl_b32 s55, s44, 14", "s_add_u32 s54, s54, s55")
    e(f"s_add_u32 s72, s{sQ}, s54", f"s_addc_u32 s73, s{sQ+1}, 0", "s_mov_b32 s75, 0x20000", "s_movk_i32 s76, 4096", "s_movk_i32 s77, 8192", "s_movk_i32 s78, 12288")
    e("s_cmp_eq_u32 s50, 2", "s_cselect_b32 s74, 16384, 0", "s_cselect_b32 s68, s4, 0")
    qst = [f"buffer_store_dwordx4 {ar(aQ + 4*i, 4)}, v{vL16}, s[72:75], {['0','s76','s77','s78'][i//4]} offen offset:{1024*(i%4)} sc1" for i in range(16)]
    k.st('attn')

    def kfrag(f):
        t, kt = divmod(f, 2); return (t >> 2) * 8 + kt * 4 + (t & 3)
    def rdK(f): return f"ds_read_b128 {ar(aR + 4*f, 4)}, v{vB} offset:{kfrag(f)*1024}"
    def rdV(f): return f"ds_read_b128 {ar(aR + 4*f, 4)}, v{vB} offset:{16384 + f*1024}"
    def maskblock(lab):
        l = [f"{lab}:", "s_mov_b32 s39, 0", f"v_mov_b32 v{T+2}, {hex(f2u(NEG))}"]
        for c in range(2):
            l.append(f"v_subrev_u32 v{T}, s40, v{vQ+c}")
            for kt in range(2):
                for i in range(4):
                    l.append(f"v_cmp_le_i32 s[{52+2*i}:{53+2*i}], {16*kt + i}, v{T}")
                for i in range(4):
                    l.append(f"v_cndmask_b32 v{ci(kt, c) + i}, v{T+2}, v{vNM+c}, s[{52+2*i}:{53+2*i}]")
        l += ["s_cmp_eq_u32 s40, s41", "s_add_u32 s40, s40, 32" , "s_cmp_eq_u32 s40, s41"]
        l = l[:-3] + ["s_cmp_eq_u32 s40, s41", f"s_cbranch_scc0 {lab}_ns",
              "s_mov_b32 s41, -1", "s_mov_b32 s32, 0",
              f"s_lshl_b32 s{sK+2}, s43, 14", f"s_add_u32 s{sV+2}, s{sK+2}, 32768",
              f"{lab}_ns:", "s_add_u32 s40, s40, 32", f"s_branch {lab}_ret"]
        return l
    def xlane(op, r0, r1):
        l = []
        for sw in ("v_permlane32_swap_b32", "v_permlane16_swap_b32"):
            l += [f"v_mov_b32 v{EP}, v{r0}", f"v_mov_b32 v{EP+1}, v{r1}", "s_nop 1", f"{sw} v{r0}, v{EP}", f"{sw} v{r1}, v{EP+1}",
                  f"{op} v{r0}, v{r0}, v{EP}", f"{op} v{r1}, v{r1}, v{EP+1}"]
        return l
    def rowmax(par, pre=None):
        l = []
        for c in range(2):
            a, b = sreg(par, 0, c), sreg(par, 1, c)
            l += [f"v_max3_f32 v{T+c}, v{a}, v{a+1}, v{a+2}", f"v_max3_f32 v{T+c}, v{T+c}, v{a+3}, v{b}",
                  f"v_max3_f32 v{T+c}, v{T+c}, v{b+1}, v{b+2}", f"v_max_f32 v{T+c}, v{T+c}, v{b+3}"]
        return l + (pre or []) + xlane("v_max_f32", T, T + 1)
    def shift(regs_by_c):
        return [f"v_sub_f32 v{r}, v{r}, v{T+c}" for c in range(2) for r in regs_by_c(c)]
    def quads(fn, c): return [fn(kt, c) + r for kt in range(2) for r in range(4)]
    def smops(par):
        seqs = []
        for c in range(2):
            src = quads(lambda kt, c: sreg(par, kt, c), c); dst = quads(ereg, c)
            seq = []
            for i in range(10):
                if i < 8: seq.append(('x', f"v_exp_f32 v{dst[i]}, v{src[i]}"))
                if 1 <= i <= 8:
                    seq.append(('v', f"v_add_f32 v{lreg(par,c)}, v{lreg(par^1,c) if i == 1 else lreg(par,c)}, v{dst[i-1]}"))
                if i in (2, 4, 6, 8): seq.append(('v', f"v_cvt_pk_bf16_f32 v{preg(par,c) + i//2 - 1}, v{dst[i-2]}, v{dst[i-1]}"))
            seqs.append(seq)
        a, b = seqs
        return a[:-2] + b[:1] + a[-2:] + b[1:-2] + [('v', f"v_add_f32 v{T}, v{lreg(par,0)}, v{lreg(par,1)}")] + b[-2:]
    def rare(par, lab, hasQK):
        l = [f"{lab}:", "s_nop 7", "s_nop 3"]
        pre = []
        for c in range(2):
            pre += [f"v_log_f32 v{EP+c}, v{lreg(par^1,c)}", "s_nop 0", f"v_max3_f32 v{T+c}, v{T+c}, v{EP+c}, 0"]
        l += rowmax(par, pre)
        l += shift(lambda c: quads(lambda kt, c: sreg(par, kt, c), c))
        if hasQK: l += shift(lambda c: quads(lambda kt, c: sreg(par ^ 1, kt, c), c))
        l += shift(lambda c: quads(ci, c)) + shift(lambda c: [vNM + c])
        l += [f"v_exp_f32 v{T}, -v{T}", f"v_exp_f32 v{T+1}, -v{T+1}", "s_nop 0"]
        for c in range(2):
            l.append(f"v_mul_f32 v{lreg(par^1,c)}, v{lreg(par^1,c)}, v{T+c}")
            for i in range(16):
                for r in range(4): l.append(f"v_mul_f32 v{oreg(i,c)+r}, v{oreg(i,c)+r}, v{T+c}")
        l += [t for _, t in smops(par)]
        l += ["s_nop 1", f"s_branch {lab}_ret"]
        return l

    def step(name, q, hasPV, hasQK, hasSM, nxt, par, extra=None, vm=24, sts=None):
        uid[0] += 1; u = uid[0]
        mf = []; reads = []
        if hasPV:
            for i in range(16):
                for cc in range(2):
                    c = cc if i % 2 == 0 else 1 - cc
                    o = vr(oreg(i, c), 4)
                    mf.append(f"v_mfma_f32_16x16x32_bf16 {o}, {ar(aR + 4*i, 4)}, {vr(preg(par^1, c), 4)}, {o}")
            reads += [rdV(f) for f in range(16)]
        if hasQK:
            for f in range(16):
                t, kt = divmod(f, 2)
                for cc in range(2):
                    c = cc if kt == 0 else 1 - cc
                    d = vr(sreg(par ^ 1, kt, c), 4)
                    src = vr(ci(kt, c), 4) if t == 0 else d
                    mf.append(f"v_mfma_f32_16x16x32_bf16 {d}, {ar(aR + 4*f, 4)}, {ar(aQ + (c*8+t)*4, 4)}, {src}")
            reads += [rdK(f) for f in range(16)]
        nM = len(mf); nF = nM // 2
        fill = {}; cost = {}
        def add(g, t, w=1):
            fill.setdefault(g, []).append(t); cost[g] = cost.get(g, 0) + w
        Bg = nM - 17
        own = list(range(8, nF)); span = Bg - 7
        rgap = {}
        for i, f in enumerate(own):
            g = (i * span) // max(1, len(own) - 1) if len(own) > 8 else i
            rgap[f] = max(g, 2 * f - 31)
        if hasQK:
            g = 0 if hasPV else -1
            add(g, "s_sub_u32 s39, s39, 1"); add(g, f"s_cbranch_scc1 L2_mk{u}"); add(g, f"L2_mk{u}_ret:", 0)
            rare_blocks.extend(maskblock(f"L2_mk{u}"))
        for f in range(0, nF, 4):
            last = f + 3
            if 2 * f - 1 >= Bg: continue
            if last < 8: young = (7 - last) + sum(1 for x in own if rgap[x] <= 2 * f - 2)
            else: young = sum(1 for x in own if x > last and rgap[x] <= 2 * f - 2)
            add(2 * f - 1, f"s_waitcnt lgkmcnt({min(15, young)})")
        for f in own: add(rgap[f], reads[f])
        dm = dmaK(q) + dmaV(q)
        if nM == 64: pos = [1, 2, 6, 11, 16, 20, 21, 26, 30, 35, 36]
        else: pos = [0, 1, 2, 3, 4, 5, 6, 8, 9, 10, 11]
        for g, t in zip(pos, dm): add(g, t)
        add(Bg - 3, f"s_add_u32 s{sS + (q^1)}, s{sS + q}, 32768")
        add(Bg - 2, f"s_cmp_eq_u32 s{sS + (q^1)}, s36"); add(Bg - 2, f"s_cselect_b32 s{sS + (q^1)}, s37, s{sS + (q^1)}")
        add(Bg - 1, f"v_add_u32 v{vB}, s{sS + (q^1)}, v{vLB}")
        add(Bg, f"s_waitcnt vmcnt({vm}) lgkmcnt(0)"); add(Bg, "s_barrier")
        if nxt:
            for f in range(8): add(Bg + 1 + 2 * f, rdK(f) if nxt == 'K' else rdV(f))
        for i, t in enumerate(sts or []): add(2 + 4 * i - (i > 3), t)
        ops = list(extra or [])
        if hasSM: ops = smops(par) + [('v', f"v_add_f32 v{T}, v{T}, v{lreg(par,1)}"), ('v', f"v_cmp_lt_f32 vcc, s38, v{T}")]
        if ops:
            g = 3; end = nM - 2
            wt = lambda o: 2 if o[0] == 'x' else 1
            total = sum(map(wt, ops))
            cap = 2
            avail = lambda x: max(0, cap - cost.get(x, 0)) if x != Bg else 0
            while sum(avail(x) for x in range(g, end)) < total: cap += 1
            rate = total / sum(avail(x) for x in range(g, end))
            budget = 0.0; i = 0
            for x in range(g, end):
                budget += avail(x) * rate
                while i < len(ops) and budget >= wt(ops[i]) - 0.5:
                    add(x, ops[i][1], wt(ops[i])); budget -= wt(ops[i]); i += 1
            while i < len(ops): add(end, ops[i][1]); i += 1
        if hasSM:
            add(nM - 1, f"s_cbranch_vccnz L2_rare{u}"); add(nM - 1, f"L2_rare{u}_ret:", 0)
            rare_blocks.extend(rare(par, f"L2_rare{u}", hasQK))
        out = weave(mf, fill)
        if name.startswith('M'):
            for pat in opt.get('kill', []):
                out = [x for x in out if not x.startswith(pat) or x.endswith(':')]
        return out

    k.label("L2_seg")
    for f in range(8): e(rdK(f))
    e("v_and_b32 v13, 15, v0", "v_bfe_u32 v14, v0, 4, 2", "v_lshlrev_b32 v14, 2, v14", "v_sub_u32 v13, v13, v14")
    e("s_lshl_b32 s40, s48, 7", "s_lshl_b32 s3, s44, 5", "s_add_u32 s3, s3, s40")
    e(f"v_add_u32 v{vQ}, s3, v13", f"v_add_u32 v{vQ+1}, 16, v{vQ}")
    for r in range(vNM, vNM + 6): e(f"v_mov_b32 v{r}, 0")
    for r in range(CI, CI + 16, 2): e(f"v_mov_b64 {vr(r,2)}, 0")
    e(*step("PRO", 0, 0, 1, 0, 'K', 1, sts=qst[:8], vm=28))
    k.st('s_pro')
    e("s_nop 7")
    e(*rowmax(0))
    e(*shift(lambda c: quads(lambda kt, c: sreg(0, kt, c), c)), *shift(lambda c: quads(ci, c)), *shift(lambda c: [vNM + c]))
    k.st('s_f')
    e("s_sub_u32 s42, s49, 2", "s_lshr_b32 s42, s42, 1")
    e(*step("F", 1, 0, 1, 1, 'V', 0, sts=qst[8:], vm=36))
    e("s_mov_b32 s74, 0")
    k.st('s_loop')
    e("s_sub_u32 s42, s42, 1", "s_cbranch_scc1 L2_tail")
    k.label("L2_loop")
    e(*step("M1", 0, 1, 1, 1, 'V', 1, vm=25))
    e(*step("M0", 1, 1, 1, 1, 'V', 0, vm=24))
    e("buffer_load_dword v125, v124, s[64:67], s79 offen", "s_add_u32 s79, s79, 8192", "s_add_u32 s79, s79, s63")
    e("s_cmp_eq_u32 s42, s62", "s_cbranch_scc1 L2_l2pf", "L2_l2pf_ret:")
    rare_blocks.extend(["L2_l2pf:", "s_lshr_b32 s3, s2, 3", f"s_mul_i32 s3, s3, {4096*896//32}", "s_add_u32 s64, s70, s3", "s_addc_u32 s65, s71, 0",
                        f"s_mov_b32 s66, {4096*896//32}", "s_mov_b32 s79, 0", f"s_movk_i32 s63, {opt.get('l2step', 32768) - 8192}", f"v_lshlrev_b32 v124, {opt.get('l2sh', 7)}, v0", "s_branch L2_l2pf_ret"])
    e("s_cmp_lg_u32 s68, 0", "s_cbranch_scc1 L2_pub1", "L2_pub1_ret:")
    e("s_sub_u32 s42, s42, 1", "s_cbranch_scc0 L2_loop")
    k.label("L2_tail")
    k.st('s_tail')
    e("s_cmp_lg_u32 s68, 0", "s_cbranch_scc1 L2_pub2", "L2_pub2_ret:")
    for i in (1, 2):
        rare_blocks.extend([f"L2_pub{i}:", "s_waitcnt vmcnt(16)"] + publish(68) + ["s_mov_b32 s68, 0", f"s_branch L2_pub{i}_ret"])
    e("s_cmp_eq_u32 s47, 1", "s_cbranch_scc0 L2_noq", "s_cmp_eq_u32 s33, 0", "s_cbranch_scc0 L2_noq", f"s_cmp_ge_u32 s46, {(64 - NA) // 4 + ((64 - NA) % 4 > 0)}", "s_cbranch_scc1 L2_noq")
    e(*poll(4, 1))
    e(*qio("buffer_load_dwordx4", LD))
    e("s_mov_b32 s33, 2")
    k.label("L2_noq")
    e("s_lshl_b32 s56, s45, 3", "s_add_u32 s56, s56, s46")
    e("s_lshl_b32 s57, s56, 16", "s_lshl_b32 s3, s44, 14", "s_add_u32 s57, s57, s3", f"s_add_u32 s57, s57, {hex(WS_PART)}")
    e("s_lshl_b32 s58, s56, 12", "s_lshl_b32 s3, s44, 10", "s_add_u32 s58, s58, s3", f"s_add_u32 s58, s58, {hex(WS_STAT)}")
    e("s_lshl_b32 s3, s44, 2", "v_mov_b32 v122, s3", f"buffer_load_dword v123, v122, s[{sF}:{sF+3}], s5 offen sc1", "s_mov_b32 s63, 0")
    if opt.get('cpf', 1): e(*k.code_pf('L2_end', 'L_done', 20, 126, 127, 3))
    e(*step("L", 0, 1, 0, 1, 'V', 1))
    def pload():
        l = [f"buffer_load_dwordx2 {vr(EP+24,2)}, v{vL16}, s[{sO}:{sO+3}], s58 offen sc1"]
        for i in range(16):
            if i and i % 4 == 0: l.append("s_add_u32 s57, s57, 4096")
            l.append(f"buffer_load_dwordx4 {vr(16 + 4*i, 4)}, v{vL16}, s[{sO}:{sO+3}], s57 offen offset:{1024*(i%4)} sc1")
        return l
    e("s_cmp_eq_u32 s50, 2", "s_cbranch_scc1 L2_pre", "L2_pre_ret:")
    rare_blocks.extend(["L2_pre:", "s_waitcnt vmcnt(8)", "v_cmp_ne_u32 vcc, s7, v123", "s_cbranch_vccnz L2_pre_ret"] + pload() + ["s_mov_b32 s63, 1", "s_branch L2_pre_ret"])
    e(*step("EPI", 1, 1, 0, 0, None, 0, vm=16))
    k.st('aend')
    vLs, vLU = lreg(1, 0), lreg(0, 0)
    A2, B2 = 122, 14
    e(*xlane("v_add_f32", vLs, vLs + 1))
    e(f"v_log_f32 v{vLU}, v{vLs}", f"v_log_f32 v{vLU+1}, v{vLs+1}", f"v_rcp_f32 v{A2}, v{vLs}", f"v_rcp_f32 v{A2+1}, v{vLs+1}")
    e(f"v_sub_f32 v{vLU}, v{vLU}, v{vNM}", f"v_sub_f32 v{vLU+1}, v{vLU+1}, v{vNM+1}")
    e("s_lshl_b32 s59, s48, 20", "s_lshl_b32 s3, s44, 18", "s_add_u32 s59, s59, s3", "s_lshl_b32 s3, s45, 13", "s_add_u32 s59, s59, s3", f"s_add_u32 s59, s59, {hex(WS_C)}")
    e(f"s_mov_b32 s60, {hex(128*1024 - 4096)}")
    e("s_lshl_b32 s69, s48, 4", "s_add_u32 s69, s69, s45", "s_lshl_b32 s69, s69, 7", f"s_add_u32 s69, s69, {512*128}")
    def outloop(merge, flags):
        idx = 0
        for c in range(2):
            for t in range(8):
                b = EP + 12 * (idx & 1); idx += 1
                s2 = "op_sel_hi:[1,0]" if c == 0 else "op_sel:[0,1] op_sel_hi:[1,1]"
                s3 = "op_sel_hi:[1,0,1]" if c == 0 else "op_sel:[0,1,0] op_sel_hi:[1,1,1]"
                for q in range(4):
                    x = b + 2 * q; o = oreg(2 * t + q // 2, c) + 2 * (q & 1)
                    if merge:
                        j = 16 + (c * 8 + t) * 4 + q
                        e(f"v_lshlrev_b32 v{x}, 16, v{j}", f"v_and_b32 v{x+1}, s61, v{j}")
                        e(f"v_pk_mul_f32 {vr(x,2)}, {vr(x,2)}, {vr(B2,2)} {s2}", f"v_pk_fma_f32 {vr(x,2)}, {vr(o,2)}, {vr(A2,2)}, {vr(x,2)} {s3}")
                    else:
                        e(f"v_pk_mul_f32 {vr(x,2)}, {vr(o,2)}, {vr(A2,2)} {s2}", f"v_mov_b64 {vr(o,2)}, 0")
                for q in range(4): e(f"v_cvt_pk_bf16_f32 v{b+8+q}, v{b+2*q}, v{b+2*q+1}")
                if t == 4: e("s_add_u32 s59, s59, 4096")
                e(f"buffer_store_dwordx4 {vr(b+8,4)}, v{vL16}, s[{sO}:{sO+3}], s59 offen offset:{1024*(t%4)}{flags}")
            if c == 0: e("s_add_u32 s59, s59, s60")
    e("s_cmp_eq_u32 s50, 2", "s_cbranch_scc1 L2_merge")
    e("s_cmp_eq_u32 s50, 1", "s_cbranch_scc0 L2_final")
    e("s_mov_b32 s59, s57", "s_movk_i32 s60, 4096", "s_mov_b32 s69, s5")
    e(f"v_mov_b32 v{EP+24}, v{vLU}", f"v_mov_b32 v{EP+25}, v{vLU+1}")
    e(f"buffer_store_dwordx2 {vr(EP+24,2)}, v{vL16}, s[{sO}:{sO+3}], s58 offen sc1")
    k.label("L2_final")
    outloop(False, " sc1")
    e("s_cmp_eq_u32 s50, 1", "s_cbranch_scc0 L2_np", "s_waitcnt vmcnt(0)", *publish(69), "s_branch L2_end", "L2_np:")
    e("s_cmp_eq_u32 s33, 2", "s_cbranch_scc0 L2_end")
    e("s_mov_b32 s33, 1", "s_sub_u32 s48, 15, s46", "s_mov_b32 s49, s43", "s_mov_b32 s39, -1", "s_mov_b32 s50, 1", "s_mov_b32 s68, s69", f"s_mov_b32 s62, {opt.get('l2at', -2)}", "s_mov_b32 s63, 0")
    e("s_waitcnt vmcnt(24)", "s_branch L2_seg")
    k.label("L2_merge")
    e("s_cmp_eq_u32 s63, 1", "s_cbranch_scc1 L2_have")
    e(*poll(5, 1), *pload())
    k.label("L2_have")
    k.st('s_got')
    e("s_mov_b32 s61, 0xffff0000")
    e("s_waitcnt vmcnt(16)")
    for c in range(2):
        e(f"v_sub_f32 v{EP+c}, v{EP+24+c}, v{vLU+c}")
        e(f"v_exp_f32 v{EP+2+c}, v{EP+c}", f"v_exp_f32 v{EP+4+c}, -v{EP+c}", "s_nop 0")
        e(f"v_add_f32 v{EP+2+c}, 1.0, v{EP+2+c}", f"v_add_f32 v{EP+4+c}, 1.0, v{EP+4+c}")
        e(f"v_rcp_f32 v{EP+2+c}, v{EP+2+c}", f"v_rcp_f32 v{B2+c}, v{EP+4+c}", "s_nop 0")
        e(f"v_mul_f32 v{A2+c}, v{A2+c}, v{EP+2+c}")
    e("s_waitcnt vmcnt(0)")
    outloop(True, STF)
    k.label("L2_end")
    k.st('s_end')
    k.rare = rare_blocks
    k.publish, k.poll, k.polladdr = publish, poll, polladdr
    return k
```

```python
from asmlib import *
WS_ST = 100 << 20
from k1 import ln_ops, MB, WS_C, WS_H, WS_HH, WS_SIZE, f2u

def tail_ids(k, flip=0):
    e = k.e
    bc = 's_bitcmp0_b32' if flip else 's_bitcmp1_b32'
    e("s_and_b32 s3, s2, 7", "s_lshr_b32 s74, s2, 3")
    e("s_sub_u32 s72, 15, s3", f"{bc} s74, 1", "s_cselect_b32 s72, s3, s72")
    e("s_lshr_b32 s73, s74, 2", "s_lshl_b32 s73, s73, 1", "s_and_b32 s3, s74, 1", "s_add_u32 s73, s73, s3")
    e("s_cmp_ge_u32 s73, 7", "s_cselect_b32 s75, 1, 0", "s_cselect_b32 s71, 7, 0", "s_sub_u32 s71, s73, s71")
    e("s_lshl_b32 s70, s72, 1", "s_add_u32 s70, s70, s75")
    e("s_and_b32 s76, s2, 6", "s_add_u32 s76, s76, s75", "s_sub_u32 s3, 15, s76", f"{bc} s74, 1", "s_cselect_b32 s76, s76, s3")
    e("s_and_b32 s3, s2, 1", "s_mul_i32 s73, s3, 7", "s_add_u32 s73, s73, s71")

def pub(k, nyoung):
    k.e(f"s_waitcnt vmcnt({nyoung})", *k.publish(69))

def probe(k, poll_sreg, nfl):
    return k.polladdr(nfl) + [f"buffer_load_dword v15, v13, s[28:31], s{poll_sreg} offen sc1"]

def wait_flags(k, poll_sreg, nfl, lab, wait):
    k.e("s_cmp_eq_u32 s44, 0", f"s_cbranch_scc0 {lab}", wait, "v_cmp_ne_u32 vcc, s7, v15", f"s_cbranch_vccz {lab}", *k.poll(poll_sreg, nfl))
    k.label(lab)
    k.e("s_barrier")

def gen_proj(k, which, opt=None):
    opt = opt or {}
    e = k.e
    L = f"L{which}"
    NS = 32 if which == 3 else 14
    TT = NS * 4
    Aoff = WS_C if which == 3 else WS_HH
    D = opt.get('D', 4); RA = D + 1; RS = 10; NP = opt.get('np', 15 if which == 3 else 4); RES = 240
    vL16, vDW, vR = 1, 4, 8
    WF, ACC, AR = 16, 48, 256 - 16 * RA
    sA, sW, sX, sO = 8, 16, 20, 24
    NST = 16 if which == 3 else 8
    e(f"s_load_dwordx2 s[10:11], s[0:1], {40 if which == 3 else 72}", f"s_load_dwordx2 s[12:13], s[0:1], {0 if which == 3 else 80}")
    if which == 3:
        tail_ids(k, opt.get('flip', 1))
        e("s_cmp_ge_u32 s74, 28", f"s_cbranch_scc0 {L}_act")
        pub(k, 0)
        e("s_branch L_fin")
        k.label(f"{L}_act")
    e("v_and_b32 v12, 63, v0")
    e("v_lshrrev_b32 v13, 3, v12", "v_mul_u32_u24 v13, 896, v13", "v_lshrrev_b32 v14, 4, v12", "v_lshlrev_b32 v14, 1, v14",
      "v_and_b32 v15, 7, v12", "v_xor_b32 v14, v14, v15", f"v_lshl_add_u32 v{vDW}, v14, 4, v13")
    for i in range(1, 4): e(f"v_add_u32 v{vDW+i}, {6144*i}, v{vDW}")
    e("v_and_b32 v13, 15, v12", "v_lshrrev_b32 v14, 4, v12", "v_lshrrev_b32 v15, 2, v13", "v_lshl_add_u32 v14, v14, 2, v15")
    e("v_and_b32 v13, 3, v13", "v_lshlrev_b32 v13, 3, v13", "v_lshl_add_u32 v13, v14, 7, v13", "s_mul_i32 s37, s44, 40960", "v_add_u32 v13, s37, v13")
    e("v_bfe_u32 v14, v14, 1, 2")
    for a in range(4): e(f"v_xor_b32 v15, {a}, v14", f"v_lshl_add_u32 v{vR+a}, v15, 5, v13")
    e("s_waitcnt lgkmcnt(0)")
    e(f"s_mul_i32 s38, s44, {NS*32*896}", "s_lshl_b32 s3, s71, 7", "s_add_u32 s38, s38, s3")
    e(f"s_add_u32 s{sW}, s10, s38", f"s_addc_u32 s{sW+1}, s11, 0", f"s_sub_u32 s{sW+2}, {TT*32*896}, s38", f"s_mov_b32 s{sW+3}, 0x20000")
    e(f"s_mul_i32 s38, s70, {4*TT*1024}", f"s_mul_i32 s3, s44, {NS*1024}", "s_add_u32 s38, s38, s3", f"s_add_u32 s38, s38, {hex(Aoff)}")
    e(f"s_add_u32 s{sA}, s14, s38", f"s_addc_u32 s{sA+1}, s15, 0", f"s_mov_b32 s{sA+2}, {hex(3*TT*1024 + NS*1024)}", f"s_mov_b32 s{sA+3}, 0x20000")
    VA = 112
    for b in range(4): e(f"v_add_u32 v{VA+b}, {b*TT*1024}, v{vL16}")
    ROT = opt.get('rot', 0)
    if which == 3: e("s_and_b32 s33, s71, 3", f"s_lshl_b32 s33, s33, {13}")
    else: e("s_lshl_b32 s33, s71, 11")
    if not ROT: e("s_mov_b32 s33, 0")
    e("s_mov_b32 s32, s33", "s_mul_i32 s36, s33, 28")
    def body(NP, var):
        vmq = []
        def track(l, tag):
            for x in l:
                if x.startswith('buffer_'): vmq.append(tag)
            return l
        def vwait(*tags):
            last = max(i for i, t in enumerate(vmq) if t in tags)
            return f"s_waitcnt vmcnt({min(63, len(vmq) - 1 - last)})"
        def adv(r):
            if which == 3: return [f"s_add_u32 s{r}, s{r}, 1024", f"s_and_b32 s{r}, s{r}, 0x7fff"]
            return [f"s_add_u32 s{r}, s{r}, 1024", f"s_cmp_eq_u32 s{r}, {NS*1024}", f"s_cselect_b32 s{r}, 0, s{r}"]
        def ldW(n):
            return track([f"s_add_u32 m0, s37, {(n % RS)*4096}", "s_nop 0"] +
                   [f"buffer_load_dwordx4 v{vDW+i}, s[{sW}:{sW+3}], s36 offen offset:{1024*i} lds" for i in range(4)] + adv(33) + ["s_mul_i32 s36, s33, 28"], ('W', n))
        def ldA(n):
            return track([f"buffer_load_dwordx4 {vr(AR + 16*(n % RA) + 4*b, 4)}, v{VA+b}, s[{sA}:{sA+3}], s32 offen sc1" for b in range(4)] + adv(32), ('A', n))
        def wreg(n, a, cnt=4, o=0):
            return ar(16 * n + 4 * a + o, cnt) if n < NP else vr(WF + 16 * (n & 1) + 4 * a + o, cnt)
        def trs(n):
            return [f"ds_read_b64_tr_b16 {wreg(n, a, 2, 2*jj)}, v{vR+a} offset:{(n%RS)*4096 + jj*2048}" for a in range(4) for jj in range(2)]
        e("s_lshl_b32 s39, s72, 11", f"s_add_u32 s39, s39, {(512 if which == 3 else 1024)*128}")
        if which == 3: e("s_lshl_b32 s3, s44, 9")
        else: e("s_mul_i32 s3, s44, 14", "s_lshr_b32 s3, s3, 2", "s_lshl_b32 s3, s3, 7")
        e("s_add_u32 s39, s39, s3", "v_bfe_u32 v3, v0, 2, 2")
        if which == 3 and ROT: e("v_add_u32 v3, s71, v3", "v_and_b32 v3, 3, v3")
        e( "v_and_b32 v13, 3, v0", "v_lshlrev_b32 v13, 2, v13", "v_lshl_add_u32 v3, v3, 7, v13")
        prb = lambda tag: track(["buffer_load_dword v15, v3, s[28:31], s39 offen sc1"], tag)
        def check(tag, mask):
            lab = f"{L}{var}_c{tag}"
            k.rare.extend([f"{lab}:", "s_mov_b32 s55, 0x10000", f"{lab}_p:", "buffer_load_dword v15, v3, s[28:31], s39 offen sc1", "s_waitcnt vmcnt(0)", "v_cmp_ne_u32 vcc, s7, v15",
                           f"s_and_b32 s3, vcc_lo, {hex(mask)}", f"s_cbranch_scc0 {lab}_r", "s_sleep 2", "s_sub_u32 s55, s55, 1", f"s_cbranch_scc0 {lab}_p", f"s_branch {lab}_r"])
            return [vwait(tag), "v_cmp_ne_u32 vcc, s7, v15", f"s_and_b32 s3, vcc_lo, {hex(mask)}", f"s_cbranch_scc1 {lab}", f"{lab}_r:"]
        e(f"s_waitcnt vmcnt({NST}) lgkmcnt(0)", "s_barrier")
        k.st(f'p{which}a')
        vmq.append('S')
        NE = opt.get('ne', 4)
        for n in range(NE): e(*ldW(n))
        e(vwait('S'), *track(k.publish(69), 'F'))
        k.st(f'p{which}b')
        if NP <= 3: e(*prb('P0'))
        for n in range(NE, RS): e(*ldW(n))
        k.st(f'p{which}c')
        if which == 3:
            k.srd(sX, 12, 2048 * 896)
            e("v_and_b32 v13, 15, v0", "v_bfe_u32 v14, v0, 4, 2", "s_lshl_b32 s3, s70, 6", "s_lshl_b32 s38, s44, 4", "s_add_u32 s3, s3, s38")
            e("v_add_u32 v13, s3, v13", "v_mul_u32_u24 v13, 896, v13", "v_lshl_add_u32 v2, v14, 3, v13", "s_lshl_b32 s38, s71, 7")
            e(*track([f"buffer_load_dwordx2 {ar(RES + 2*a, 2)}, v2, s[{sX}:{sX+3}], s38 offen offset:{32*a}" for a in range(4)], 'X'))
        for n in range(NP + 1):
            if n == max(0, NP - opt.get('pb', 3)) and NP > 3: e(*prb('P0'))
            if n < NP: e(vwait(('W', n)), *trs(n))
            if n >= 1 and n - 1 + RS < NS:
                e(f"s_waitcnt lgkmcnt({8 if n < NP else 0})", *ldW(n - 1 + RS))
        k.st(f'p{which}d')
        e(*check('P0', (0xf if D <= 5 else 0xff) if which == 3 else 0xffff))
        k.st(f'p{which}go')
        for n in range(D): e(*ldA(n))
        for n in range(NS):
            mf = []
            for a in range(4):
                for bi in range(4):
                    b = bi if a % 2 == 0 else 3 - bi
                    t = vr(ACC + (a * 4 + b) * 4, 4)
                    mf.append(f"v_mfma_f32_16x16x32_bf16 {t}, {wreg(n, a)}, {vr(AR + 16*(n%RA) + 4*b, 4)}, {t if n else 0}")
            fill = {-1: [vwait(('A', n)) + " lgkmcnt(0)"]}
            if NP <= n + 1 < NS:
                fill[0] = [vwait(('W', n + 1))]
                for i, t in enumerate(trs(n + 1)): fill.setdefault(i // 2, []).append(t)
            cp = ([8 - D] if D <= 5 else []) + [16 - D, 24 - D]
            if which == 3 and n in cp: fill.setdefault(2, []).extend(check(f'P{n}', 0xf << ((n + D) // 2)))
            if which == 3 and n + 3 in cp: fill.setdefault(3, []).extend(prb(f'P{n+3}'))
            l = []
            if n + D < NS: l += ldA(n + D)
            if n >= NP and n + RS < NS: l += ldW(n + RS)
            for i, t in enumerate(l): fill.setdefault(4 + (i * 11) // 17, []).append(t)
            out = weave(mf, fill)
            for pat in opt.get('kill', []): out = [x for x in out if pat not in x]
            e(*out)
    if which == 3 and opt.get('np2', None) is not None:
        e("s_bitcmp1_b32 s74, 1", "s_cbranch_scc1 L3_late")
        body(opt.get('np2', 2), 'a')
        e("s_branch L3_join")
        k.label("L3_late")
        body(NP, 'b')
        k.label("L3_join")
    else:
        body(NP, '')
    k.st(f'p{which}end')
    e("s_barrier")
    e("s_lshl_b32 s3, s44, 14", f"v_add_u32 v12, s3, v{vL16}")
    for a in range(4):
        for b in range(4):
            e(f"ds_write_b128 v12, {vr(ACC + (a*4+b)*4, 4)} offset:{(a*4+b)*1024}")
    e("s_lshl_b32 s3, s44, 10", f"v_add_u32 v12, s3, v{vL16}")
    if which == 3: k.srd(sO, 14, 128 * 14 * 1024, add=WS_H)
    else: k.srd(sO, 12, 2048 * 896)
    e("s_waitcnt lgkmcnt(0)", "s_barrier")
    for sw in range(4):
        for a in range(4):
            e(f"ds_read_b128 {vr(ACC + (sw*4+a)*4, 4)}, v12 offset:{sw*16384 + a*4096}")
    e("s_mov_b32 s34, 0xffff0000")
    for i in range(8): e(f"v_accvgpr_read_b32 v{AR+i}, a{RES+i}")
    e("s_waitcnt lgkmcnt(0)")
    for a in range(4):
        for r in range(4):
            x = ACC + a * 4 + r
            e(f"v_add_f32 v{x}, v{x}, v{x+16}", f"v_add_f32 v{x+32}, v{x+32}, v{x+48}")
        for r in range(4):
            x = ACC + a * 4 + r
            src = AR + 2 * a + r // 2
            e(f"v_lshlrev_b32 v{WF+r}, 16, v{src}" if r % 2 == 0 else f"v_and_b32 v{WF+r}, s34, v{src}")
            e(f"v_add_f32 v{x}, v{x}, v{x+32}")
        for r in range(4):
            x = ACC + a * 4 + r
            e(f"v_add_f32 v{x}, v{x}, v{WF+r}")
        e(f"v_cvt_pk_bf16_f32 v{WF + 8 + 2*a}, v{ACC+a*4}, v{ACC+a*4+1}", f"v_cvt_pk_bf16_f32 v{WF + 9 + 2*a}, v{ACC+a*4+2}, v{ACC+a*4+3}")
    if which == 3:
        e("s_lshl_b32 s3, s70, 2", "s_add_u32 s3, s3, s44", "s_mul_i32 s3, s3, 14", "s_lshl_b32 s38, s71, 1", "s_add_u32 s3, s3, s38", "s_lshl_b32 s38, s3, 10")
        for t in range(2): e(f"buffer_store_dwordx4 {vr(WF + 8 + 4*t, 4)}, v{vL16}, s[{sO}:{sO+3}], s38 offen offset:{1024*t} sc1")
        e(f"v_add_f32 v12, v{ACC}, v{ACC+1}", f"v_mul_f32 v13, v{ACC}, v{ACC}", f"v_fma_f32 v13, v{ACC+1}, v{ACC+1}, v13")
        for i in range(2, 16): e(f"v_add_f32 v12, v12, v{ACC+i}", f"v_fma_f32 v13, v{ACC+i}, v{ACC+i}, v13")
        for sw in ("v_permlane32_swap_b32", "v_permlane16_swap_b32"):
            e("v_mov_b32 v14, v12", "v_mov_b32 v15, v13", "s_nop 1", f"{sw} v12, v14", f"{sw} v13, v15", "v_add_f32 v12, v12, v14", "v_add_f32 v13, v13, v15")
        e("s_lshl_b32 s3, s70, 2", "s_add_u32 s3, s3, s44", "s_lshl_b32 s3, s3, 10", f"s_add_u32 s3, s3, {hex(WS_ST)}")
        e(f"s_add_u32 s{sX}, s14, s3", f"s_addc_u32 s{sX+1}, s15, 0", f"s_movk_i32 s{sX+2}, 1024", f"v_lshlrev_b32 v14, 2, v{vL16}", "s_lshl_b32 s3, s71, 3")
        e(f"buffer_store_dwordx2 v[12:13], v14, s[{sX}:{sX+3}], s3 offen sc1")
        for i in range(8): e(f"v_accvgpr_write_b32 a{RES+i}, v{WF+8+i}")
        e("s_and_b32 s3, s70, 1", "s_mul_i32 s3, s3, 7", "s_add_u32 s3, s3, s71", "s_lshl_b32 s69, s72, 4", "s_add_u32 s69, s69, s3", "s_lshl_b32 s69, s69, 7", f"s_add_u32 s69, s69, {768*128}")
    else:
        e("v_and_b32 v13, 15, v0", "v_bfe_u32 v14, v0, 4, 2", "s_lshl_b32 s3, s70, 6", "s_lshl_b32 s38, s44, 4", "s_add_u32 s3, s3, s38")
        e("v_add_u32 v13, s3, v13", "v_mul_u32_u24 v13, 896, v13", "v_lshl_add_u32 v13, v14, 3, v13", "s_lshl_b32 s38, s71, 7")
        for a in range(4): e(f"buffer_store_dwordx2 {vr(WF + 8 + 2*a, 2)}, v13, s[{sO}:{sO+3}], s38 offen offset:{32*a}{opt.get('ost', '')}")

def gen_k4(k, opt=None):
    opt = opt or {}
    e = k.e
    vL16, vW, vDW = 1, 2, 16
    Y, XN, EP = 32, 112, 224
    sG, sU, sX, sO = 8, 16, 20, 24
    e("s_load_dwordx4 s[32:35], s[0:1], 56")
    e("v_and_b32 v22, 63, v0", "v_and_b32 v24, 15, v22", "v_lshrrev_b32 v25, 4, v22")
    k.srd(sX, 14, 128 * 14 * 1024, add=WS_H)
    k.srd(sO, 14, 128 * 56 * 1024, add=WS_HH)
    e("s_lshl_b32 s3, s76, 3", "s_lshl_b32 s36, s44, 1", "s_add_u32 s36, s36, s3")
    e("s_lshl_b32 s3, s44, 3", "v_add_u32 v26, s3, v25", "v_mul_u32_u24 v26, 3584, v26")
    e("v_lshlrev_b32 v27, 1, v25", "v_xor_b32 v27, v27, v24", "v_xor_b32 v28, 8, v27")
    e(f"v_lshl_add_u32 v{vDW}, v27, 4, v26", "v_lshl_add_u32 v28, v28, 4, v26", f"v_add_u32 v{vDW+1}, {4*3584 - 1024}, v28")
    e("s_lshl_b32 s38, s44, 11", "s_mov_b32 s50, 0", "s_lshl_b32 s3, s73, 8")
    e("s_waitcnt lgkmcnt(0)")
    for S, P in ((sG, 32), (sU, 34)):
        e(f"s_add_u32 s{S}, s{P}, s3", f"s_addc_u32 s{S+1}, s{P+1}, 0", f"s_sub_u32 s{S+2}, {448*3584}, s3", f"s_mov_b32 s{S+3}, 0x20000")
    def dma(slot):
        l = []
        for mat, S in enumerate((sG, sU)):
            l.append(f"s_add_u32 m0, s38, {slot*16384 + mat*8192}")
            l += [f"buffer_load_dwordx4 v{vDW+i}, s[{S}:{S+3}], s50 offen offset:{1024*i} lds" for i in range(2)]
        l.append(f"s_add_u32 s50, s50, {32*3584}")
        return l
    def dmas(m):
        d = dma(m); return [d[0], "s_nop 0", d[1], d[2], d[3], "s_nop 0", *d[4:]]
    e("s_barrier")
    NP = opt.get('np', 10)
    NE = opt.get('ne', 4)
    for m in range(NE): e(*dmas(m))
    pub(k, 4 * NE)
    e("s_lshl_b32 s39, s76, 11", f"s_add_u32 s39, s39, {768*128}")
    for m in range(NE, NP):
        if m == NP - 3: e(*probe(k, 39, 14))
        e(*dmas(m))
    e("v_lshrrev_b32 v26, 2, v24", "v_lshl_add_u32 v26, v25, 2, v26", "v_and_b32 v27, 3, v24", "v_lshlrev_b32 v27, 3, v27", "v_lshl_add_u32 v27, v26, 8, v27")
    e("v_and_b32 v28, 7, v26")
    for a in range(8): e(f"v_xor_b32 v29, {a}, v28", f"v_lshl_add_u32 v{vW+a}, v29, 5, v27")
    e("s_lshl_b32 s3, s36, 10", f"s_add_u32 s3, s3, {hex(WS_ST)}", "s_add_u32 s40, s14, s3", "s_addc_u32 s41, s15, 0", "s_movk_i32 s42, 2048", "s_mov_b32 s43, 0x20000")
    e("v_lshlrev_b32 v18, 6, v24", "v_lshl_add_u32 v18, v25, 4, v18", "v_cmp_eq_u32 s[48:49], 3, v25")
    wait_flags(k, 39, 14, "L4_s", "s_waitcnt vmcnt(12)")
    k.st('p4go')
    e("buffer_load_dwordx4 v[96:99], v18, s[40:43], 0 offen sc1" , "buffer_load_dwordx4 v[100:103], v18, s[40:43], 0 offen offset:1024 sc1")
    e("s_mul_i32 s37, s36, 14336", "s_add_u32 s45, s37, 14336")
    for m in range(14):
        if m % 4 == 0 and m: e("s_add_u32 s37, s37, 4096", "s_add_u32 s45, s45, 4096")
        for c in range(2):
            e(f"buffer_load_dwordx4 {vr(XN + (m*2+c)*4, 4)}, v{vL16}, s[{sX}:{sX+3}], s{45 if c else 37} offen offset:{1024*(m%4)} sc1")
    for m in range(NP, 10): e(*dmas(m))
    NY = 4 * (10 - NP)
    e(f"s_waitcnt vmcnt({28 + NY})")
    k.st('p4ln')
    e(f"s_mov_b32 s3, {hex(f2u(1.0/448))}", f"s_mov_b32 s46, {hex(f2u(1e-5))}", "s_mov_b32 s47, 0xffff0000")
    for c in range(2):
        b = 96 + 4 * c
        e(f"v_cndmask_b32 v{b+2}, v{b+2}, 0, s[48:49]", f"v_cndmask_b32 v{b+3}, v{b+3}, 0, s[48:49]", f"v_add_f32 v{24+c}, v{b}, v{b+2}", f"v_add_f32 v{26+c}, v{b+1}, v{b+3}")
    for sw in ("v_permlane32_swap_b32", "v_permlane16_swap_b32"):
        for R in (24, 25, 26, 27): e(f"v_mov_b32 v{R+4}, v{R}")
        for R in (24, 25, 26, 27): e(f"{sw} v{R}, v{R+4}")
        for R in (24, 25, 26, 27): e(f"v_add_f32 v{R}, v{R}, v{R+4}")
    for c in range(2):
        e(f"v_mul_f32 v{24+c}, s3, v{24+c}", f"v_mul_f32 v{26+c}, s3, v{26+c}")
        e(f"v_fma_f32 v{26+c}, -v{24+c}, v{24+c}, v{26+c}", f"v_max_f32 v{26+c}, 0, v{26+c}", f"v_add_f32 v{26+c}, s46, v{26+c}")
        e(f"v_rsq_f32 v{26+c}, v{26+c}", "s_nop 0", f"v_mul_f32 v{24+c}, -v{24+c}, v{26+c}")
    def norm(m):
        l = []
        for c in range(2):
            for r in range(4):
                x = XN + (m * 2 + c) * 4 + r
                t = 28 + 2 * (r & 1)
                l += [f"v_lshlrev_b32 v{t}, 16, v{x}", f"v_and_b32 v{t+1}, s47, v{x}"]
                if opt.get('pk', 1): l += [f"v_pk_fma_f32 {vr(t,2)}, {vr(t,2)}, v[26:27], v[24:25] " + ("op_sel_hi:[1,0,0]" if c == 0 else "op_sel:[0,1,1] op_sel_hi:[1,1,1]")]
                else: l += [f"v_fma_f32 v{t}, v{t}, v{26+c}, v{24+c}", f"v_fma_f32 v{t+1}, v{t+1}, v{26+c}, v{24+c}"]
                l += [f"v_cvt_pk_bf16_f32 v{x}, v{t}, v{t+1}"]
        return l
    NPRE = opt.get('npre', 14)
    for m in range(NPRE): e(f"s_waitcnt vmcnt({26 - 2*m + NY})", *norm(m))
    e("s_barrier")
    NR, LA = 16, 6
    def rdQ(f, jj):
        m, j = divmod(f, 16)
        off = ((m if m < 10 else m - 10) * 16384) & 0xffff
        a, mat = divmod(j, 2)
        return f"ds_read_b64_tr_b16 {vr(Y + 4*(f % NR) + 2*jj, 2)}, v{vW + a} offset:{off + mat*8192 + jj*4096}"
    mf = []; fill = {}
    def add(g, *t): fill.setdefault(g, []).extend(t)
    for f in range(LA): add(-1, rdQ(f, 0), rdQ(f, 1))
    NF = 14 * 16
    for f in range(NF):
        m, j = divmod(f, 16)
        for ci in range(2):
            c = ci if j % 2 == 0 else 1 - ci
            t = ar((j * 2 + c) * 4, 4)
            mf.append(f"v_mfma_f32_16x16x32_bf16 {t}, {vr(Y + 4*(f % NR), 4)}, {vr(XN + (m*2+c)*4, 4)}, {t if m else 0}")
        g0 = 2 * f; nxt = f + LA
        if f % 2 == 0:
            rem = max(0, min(NF, f + LA) - (f + 2))
            add(g0 - 1, f"s_waitcnt lgkmcnt({2 * rem})")
        if nxt < NF:
            mn, jn = divmod(nxt, 16)
            if jn == 0 and mn in (4, 8):
                add(g0 - 1, *[f"v_add_u32 v{vW+a}, 0x10000, v{vW+a}" for a in range(8)])
            if jn == 0 and mn == 10:
                add(g0 - 1, *[f"v_subrev_u32 v{vW+a}, 0x20000, v{vW+a}" for a in range(8)])
                add(g0 - 1, "s_waitcnt vmcnt(0)", "s_barrier")
            add(g0, rdQ(nxt, 0)); add(g0 + 1, rdQ(nxt, 1))
        if j == 0 and m + NPRE < 14:
            l = norm(m + NPRE)
            if m < 4: add(g0, f"s_waitcnt vmcnt({max(0, 26 - 2*(m + NPRE) + NY) if m < 3 else NY})")
            for i, x in enumerate(l): add(g0 + (i * 30) // len(l), x)
        if nxt < NF and nxt == 16 * NP and NP < 10: add(g0 - 1, "s_waitcnt vmcnt(0)", "s_barrier")
        if f == 4 * 16 + 2: add(g0, "s_barrier")
        if 4 * 16 + 4 <= f < 4 * 16 + 4 + 28:
            n = f - (4 * 16 + 4)
            add(g0 + (n & 1), dma(n // 7)[n % 7])
    e(*weave(mf, fill))
    k.st('p4end')
    e("s_mul_i32 s37, s36, 57344", "s_lshl_b32 s3, s73, 12", "s_add_u32 s37, s37, s3", "s_nop 4")
    idx = 0
    for c in range(2):
        for t4 in range(4):
            t = EP + 0
            for h in range(2):
                a = 2 * t4 + h
                for r in range(4):
                    e(f"v_accvgpr_read_b32 v{t + 4*h + r}, a{((a*2 + 0) * 2 + c) * 4 + r}", f"v_accvgpr_read_b32 v{t + 8 + 4*h + r}, a{((a*2 + 1) * 2 + c) * 4 + r}")
            for i in range(8): e(f"v_mul_f32 v{t+i}, v{t+i}, v{t+8+i}")
            o = EP + 16 + 4 * (idx & 1); idx += 1
            for q in range(4): e(f"v_cvt_pk_bf16_f32 v{o + q}, v{t + 2*q}, v{t + 2*q + 1}")
            e(f"buffer_store_dwordx4 {vr(o, 4)}, v{vL16}, s[{sO}:{sO+3}], s37 offen offset:{1024 * t4} sc1")
        if c == 0: e("s_add_u32 s37, s37, 57344")
    e("s_lshl_b32 s69, s76, 4", "s_add_u32 s69, s69, s73", "s_lshl_b32 s69, s69, 7", f"s_add_u32 s69, s69, {1024*128}")
```
